```python
import torch

def _softmax(x, axis=-1):
    return torch.softmax(x, dim=axis)
def _gelu(x):
    return torch.nn.functional.gelu(x, approximate="tanh")
def _silu(x):
    return torch.nn.functional.silu(x)
def _sigmoid(x):
    return torch.sigmoid(x)
def _layernorm(x, axis=-1, eps=1e-5):
    m = x.mean(dim=axis, keepdim=True)
    v = x.var(dim=axis, keepdim=True, unbiased=False)
    return (x - m) / torch.sqrt(v + eps)
def _scatter_add(tgt, idx, src, axis=0):
    return tgt.clone().index_add_(axis, idx, src)
def _segment_sum(src, seg, n):
    out = torch.zeros((n,) + src.shape[1:], dtype=src.dtype)
    return out.index_add_(0, seg, src)
def _pad(x, pw):
    flat = tuple(v for pair in reversed(pw) for v in pair)
    return torch.nn.functional.pad(x, flat)

kernel_name = 'standalone__moe_arch_mod__prompt'

def setup_inputs():

    _w = (lambda a: (lambda t: t.to(torch.bfloat16) if t.is_floating_point() else t)(torch.as_tensor(a)))
    B, S, D, F, C = 1, 2048, 576, 4608, 2
    return {
        "x": _w((lambda *s: torch.randn(*s, dtype=torch.bfloat16) * 0.1)(B, S, D)),
        "w_r": _w((lambda *s: torch.randn(*s, dtype=torch.bfloat16) * 0.1)(D)),
        "w_gate": _w((lambda *s: torch.randn(*s, dtype=torch.bfloat16) * 0.1)(D, F)),
        "w_up": _w((lambda *s: torch.randn(*s, dtype=torch.bfloat16) * 0.1)(D, F)),
        "w_down": _w((lambda *s: torch.randn(*s, dtype=torch.bfloat16) * 0.1)(F, D)),
    }

def reference(x, w_r, w_gate, w_up, w_down):
    B, S, D = x.shape
    C = 2
    r = x @ w_r
    idx = torch.argsort(-r, axis=-1)[:, :C]
    idx_e = (lambda x, n, axis: torch.repeat_interleave(x, n, dim=axis))(idx.reshape(B, C, 1), D, axis=2)
    x_sel = (lambda x, i, axis: torch.take_along_dim(x, i, dim=axis))(x, idx_e, axis=1)
    g = _silu(x_sel @ w_gate)
    u = x_sel @ w_up
    y = (g * u) @ w_down
    r_sel = _sigmoid((lambda x, i, axis: torch.take_along_dim(x, i, dim=axis))(r, idx, axis=1))
    y = y * r_sel.reshape(B, C, 1)
    b_off = (torch.arange(B) * S).reshape(B, 1)
    flat_idx = (idx + b_off).reshape(B * C)
    zero = (x * 0.0).reshape(B * S, D)
    upd = _scatter_add(zero, flat_idx, y.reshape(B * C, D), axis=0)
    return x + upd.reshape(B, S, D)
```

```python
import sys
NAME="standalone__moe_arch_mod__prompt"
HDR=open('cdna_kernels/%s.s.ref'%NAME).read().split('; Override launch')[0]
CAND=4096
PART=16384
o=[]
def e(s): o.append(s)

def desc(name, vgpr, sgpr=96):
    acc=(vgpr+3)//4*4
    return f""".section .rodata,"a"
.p2align 6
.amdhsa_kernel {name}
  .amdhsa_next_free_vgpr {vgpr}
  .amdhsa_next_free_sgpr {sgpr}
  .amdhsa_accum_offset {acc}
  .amdhsa_group_segment_fixed_size 0
  .amdhsa_kernarg_size 64
  .amdhsa_user_sgpr_count 2
  .amdhsa_user_sgpr_kernarg_segment_ptr 1
  .amdhsa_system_sgpr_workgroup_id_x 1
  .amdhsa_float_denorm_mode_32 3
.end_amdhsa_kernel
.text
"""
def start(name):
    e(f".globl {name}\n.p2align 8\n.type {name},@function\n{name}:")

DPP=" row_mask:0xf bank_mask:0xf"
def top2_merge_dpp(a1,a2,m,ctrl,rowmask=0xf):
    d=f" {ctrl} row_mask:{rowmask:#x} bank_mask:0xf"
    e("s_nop 1")
    e(f"v_min_u32_dpp v{m}, v{a1}, v{a1}{d}")
    e(f"v_max_u32_dpp v{a2}, v{a2}, v{a2}{d}")
    e(f"v_max_u32_dpp v{a1}, v{a1}, v{a1}{d}")
    e(f"v_max_u32 v{a2}, v{a2}, v{m}")

def gather_top2(base):
    b=base
    e(f"v_and_b32 v{b+16}, 63, v0")
    e(f"v_lshlrev_b32 v{b+16}, 4, v{b+16}")
    e(f"v_add_u32 v{b+16}, {CAND}, v{b+16}")
    for i in range(4):
        e(f"global_load_dwordx4 v[{b+4*i}:{b+4*i+3}], v{b+16}, s[10:11] offset:{i*1024}")
    e("s_waitcnt vmcnt(0)")
    for i in range(1,4):
        e(f"v_min_u32 v{b+2}, v{b}, v{b+4*i}")
        e(f"v_max_u32 v{b}, v{b}, v{b+4*i}")
        e(f"v_max3_u32 v{b+1}, v{b+1}, v{b+4*i+1}, v{b+2}")
    for ctrl in ("row_ror:8","row_ror:4","row_ror:2","row_ror:1"):
        top2_merge_dpp(b,b+1,b+2,ctrl)
    top2_merge_dpp(b,b+1,b+2,"row_bcast:15",0xa)
    top2_merge_dpp(b,b+1,b+2,"row_bcast:31",0xc)
    e("s_nop 1")
    e(f"v_readlane_b32 s20, v{b}, 63")
    e(f"v_readlane_b32 s21, v{b+1}, 63")
    e("s_nop 3")
    e("s_and_b32 s22, s20, 0x7ff")
    e("s_and_b32 s23, s21, 0x7ff")
    e("s_sub_u32 s22, 2047, s22")
    e("s_sub_u32 s23, 2047, s23")
    e("s_mul_i32 s22, s22, 1152")
    e("s_mul_i32 s23, s23, 1152")

e(HDR.rstrip())
extra = int(sys.argv[1]) if len(sys.argv)>1 else 0
e("; @launch kernel=k1_kernel grid=(256,1,1) block=(64,1,1) lds=0")
e("; @launch kernel=k2_kernel grid=(144,1,1) block=(512,1,1) lds=2048")
e("; @launch kernel=k3_kernel grid=(72,1,1) block=(64,1,1) lds=0")
for i in range(extra):
    e("; @launch kernel=k4_kernel grid=(1,1,1) block=(64,1,1) lds=0")
e('.amdgcn_target "amdgcn-amd-amdhsa--gfx950"\n.text')

start("k1_kernel")
e("s_cmp_ge_u32 s2, 256\ns_cbranch_scc1 L1_end")
e("s_load_dwordx4 s[4:7], s[0:1], 0")
e("s_load_dwordx2 s[8:9], s[0:1], 40")
e("s_load_dwordx2 s[10:11], s[0:1], 56")
e("v_lshrrev_b32 v1, 3, v0")
e("v_and_b32 v2, 7, v0")
e("v_lshlrev_b32 v2, 4, v2")
e("s_lshl_b32 s3, s2, 3")
e("v_add_u32 v3, s3, v1")
e("v_mul_u32_u24 v4, 1152, v3")
e("v_add_u32 v4, v4, v2")
e("s_waitcnt lgkmcnt(0)")
X=8; W=44
for i in range(9): e(f"global_load_dwordx4 v[{X+4*i}:{X+4*i+3}], v4, s[4:5] offset:{128*i}")
for i in range(9): e(f"global_load_dwordx4 v[{W+4*i}:{W+4*i+3}], v2, s[6:7] offset:{128*i}")
for k in range(4): e(f"v_mov_b32 v{80+k}, 0")
e("v_sub_u32 v5, 2047, v3")
e("s_mov_b32 s12, 0xffff0000")
for i in range(9):
    e(f"s_waitcnt vmcnt({8-i})")
    for k in range(4): e(f"v_dot2c_f32_bf16 v{80+k}, v{X+4*i+k}, v{W+4*i+k}")
e("s_nop 2")
e("v_add_f32 v80, v80, v81\nv_add_f32 v82, v82, v83\nv_add_f32 v80, v80, v82")
for ctrl in ("quad_perm:[1,0,3,2]","quad_perm:[2,3,0,1]","row_half_mirror"):
    e("s_nop 1")
    e(f"v_add_f32_dpp v80, v80, v80 {ctrl}{DPP}")
e("v_cvt_pk_bf16_f32 v81, v80, v80")
e("v_ashrrev_i32 v82, 31, v81")
e("v_or_b32 v82, 0x80000000, v82")
e("v_xor_b32 v81, v81, v82")
e("v_cmp_u_f32 vcc, v80, v80")
e("s_nop 1")
e("v_cndmask_b32 v81, v81, 0, vcc")
e("v_bfi_b32 v81, s12, v81, v5")
e("s_nop 1")
e(f"v_min_u32_dpp v82, v81, v81 row_ror:8{DPP}")
e(f"v_max_u32_dpp v81, v81, v81 row_ror:8{DPP}")
top2_merge_dpp(81,82,83,"row_bcast:15",0xa)
top2_merge_dpp(81,82,83,"row_bcast:31",0xc)
e("s_movk_i32 s15, 0x207\nv_cmp_class_f32 vcc, v80, s15")
e("s_cbranch_vccz L1_fin")
e("s_mov_b32 s13, 0x7f807f80\ns_mov_b32 s14, 0x00400040")
for k in range(36):
    e(f"v_and_b32 v84, s13, v{X+k}")
    e(f"v_add_u32 v84, 0x00800080, v84")
    e(f"v_lshrrev_b32 v84, 9, v84")
    e(f"v_and_or_b32 v{X+k}, v84, s14, v{X+k}")
e("L1_fin:")
for i in range(9): e(f"global_store_dwordx4 v4, v[{X+4*i}:{X+4*i+3}], s[8:9] offset:{128*i}")
e("v_mov_b32 v84, v81\nv_mov_b32 v85, v82\nv_mov_b32 v86, 0\nv_mov_b32 v87, 0")
e("s_lshl_b32 s3, s2, 4\ns_add_u32 s3, s3, %d"%CAND)
e("v_mov_b32 v6, s3")
e("s_mov_b32 exec_lo, 0\ns_mov_b32 exec_hi, 0x80000000")
e("global_store_dwordx4 v6, v[84:87], s[10:11]")
e("L1_end:\ns_endpgm")
e(desc("k1_kernel",88))

start("k2_kernel")
e("s_cmp_ge_u32 s2, 144\ns_cbranch_scc1 L2_end")
e("s_load_dwordx2 s[4:5], s[0:1], 0")
e("s_load_dwordx4 s[12:15], s[0:1], 16")
e("s_load_dwordx2 s[16:17], s[0:1], 32")
e("s_load_dwordx2 s[10:11], s[0:1], 56")
e("v_lshrrev_b32 v1, 6, v0")
e("s_nop 0")
e("v_readfirstlane_b32 s3, v1")
e("v_and_b32 v1, 63, v0")
e("v_lshrrev_b32 v2, 4, v1")
e("v_and_b32 v3, 15, v1")
e("s_and_b32 s24, s2, 7\ns_mul_i32 s24, s24, 18\ns_lshr_b32 s25, s2, 3\ns_add_u32 s24, s24, s25")
e("s_cmp_ge_u32 s3, 3\ns_cbranch_scc1 L2_down")
e("v_lshrrev_b32 v4, 3, v3")
e("v_lshl_add_u32 v4, v4, 2, v2")
e("v_mul_u32_u24 v4, 24, v4")
e("s_mul_i32 s26, s3, 192")
e("v_add_u32 v4, s26, v4")
e("s_movk_i32 s27, 9216")
e("v_mul_lo_u32 v5, v4, s27")
e("v_and_b32 v6, 3, v3")
e("v_lshl_add_u32 v5, v6, 4, v5")
e("s_lshl_b32 s28, s24, 6")
e("v_add_u32 v5, s28, v5")
e("v_and_b32 v6, 4, v3")
e("v_cmp_eq_u32 vcc, 0, v6")
e("s_waitcnt lgkmcnt(0)")
e("v_mov_b32 v8, s14\nv_mov_b32 v9, s15\nv_mov_b32 v6, s12\nv_mov_b32 v7, s13")
e("v_cndmask_b32 v8, v8, v6, vcc\nv_cndmask_b32 v9, v9, v7, vcc")
e("v_mov_b32 v7, 0\nv_mov_b32 v6, v5")
e("v_lshl_add_u64 v[8:9], v[6:7], 0, v[8:9]")
e("s_mov_b32 s28, 9216\ns_mov_b32 s29, 0")
L=64
for ii in range(24):
    e(f"global_load_dwordx4 v[{L+4*ii}:{L+4*ii+3}], v[8:9], off")
    if ii<23: e("v_lshl_add_u64 v[8:9], s[28:29], 0, v[8:9]")
XA=160
for k in range(48): e(f"v_mov_b32 v{XA+k}, 0")
e("s_mov_b32 s30, 0x05040100\ns_mov_b32 s31, 0x07060302")
for bi in range(3):
    e(f"s_waitcnt vmcnt({16-8*bi})")
    src=L+32*bi; dst=src-32
    for j in range(4):
        for r in range(4):
            a=src+8*r+j; b=src+8*r+4+j
            e(f"v_perm_b32 v{dst+8*j+r}, v{b}, v{a}, s30")
            e(f"v_perm_b32 v{dst+8*j+4+r}, v{b}, v{a}, s31")
gather_top2(12)
e("v_bfe_u32 v4, v3, 1, 1")
e("v_lshl_add_u32 v4, v4, 2, v2")
e("v_mul_u32_u24 v4, 48, v4")
e("s_lshl_b32 s26, s26, 1")
e("v_add_u32 v4, s26, v4")
e("v_and_b32 v5, 1, v3")
e("v_cmp_eq_u32 vcc, 0, v5")
e("v_mov_b32 v5, s23\nv_mov_b32 v6, s22")
e("v_cndmask_b32 v5, v5, v6, vcc")
e("v_add_u32 v4, v4, v5")
for jj in range(4):
    m=0x000F000F<<(4*jj)
    e(f"s_mov_b32 exec_lo, {m:#x}\ns_mov_b32 exec_hi, {m:#x}")
    for bi in range(3):
        r=XA+16*bi+4*jj
        e(f"global_load_dwordx4 v[{r}:{r+3}], v4, s[4:5] offset:{16*bi}")
e("s_mov_b64 exec, -1")
e("s_waitcnt vmcnt(0)")
DA=12; DB=16
for bi in range(3):
    dst=L+32*bi-32
    for j in range(8):
        D=DA if j<4 else DB
        c = "0" if (bi==0 and j in (0,4)) else f"v[{D}:{D+3}]"
        xa=XA+16*bi+4*(j&3)
        e(f"v_mfma_f32_16x16x32_bf16 v[{D}:{D+3}], v[{xa}:{xa+3}], v[{dst+4*j}:{dst+4*j+3}], {c}")
e("v_and_b32 v4, 3, v3")
e("v_lshl_add_u32 v4, v4, 3, v2")
e("v_lshlrev_b32 v4, 5, v4")
e("v_and_b32 v5, 4, v3")
e("v_lshl_add_u32 v4, v5, 2, v4")
e("s_lshl_b32 s26, s3, 2")
e("v_add_u32 v4, s26, v4")
e("s_nop 7")
e(f"v_add_f32_dpp v20, v{DA+2}, v{DA} row_ror:8{DPP}")
e(f"v_add_f32_dpp v21, v{DA+3}, v{DA+1} row_ror:8{DPP}")
e(f"v_add_f32_dpp v22, v{DB+2}, v{DB} row_ror:8{DPP}")
e(f"v_add_f32_dpp v23, v{DB+3}, v{DB+1} row_ror:8{DPP}")
e("s_mov_b32 exec_lo, 0x00ff00ff\ns_mov_b32 exec_hi, 0x00ff00ff")
e("ds_write_b32 v4, v20")
e("ds_write_b32 v4, v21 offset:1024")
e("ds_write_b32 v4, v22 offset:128")
e("ds_write_b32 v4, v23 offset:1152")
e("s_waitcnt lgkmcnt(0)\ns_barrier\ns_endpgm")
e("L2_down:")
e("s_sub_u32 s3, s3, 3")
e("s_lshl_b32 s26, s24, 5")
e("v_lshl_add_u32 v4, v2, 3, s26")
e("v_mul_u32_u24 v4, 1152, v4")
e("v_lshl_add_u32 v4, v3, 4, v4")
e("s_lshl_b32 s27, s3, 8")
e("v_add_u32 v4, s27, v4")
e("v_add_u32 v5, 4608, v4")
e("s_cmp_eq_u32 s3, 4")
e("s_cselect_b32 s28, 0x00ff00ff, -1")
e("s_mov_b32 exec_lo, s28\ns_mov_b32 exec_hi, s28")
e("s_waitcnt lgkmcnt(0)")
L=32
for i in range(8):
    e(f"global_load_dwordx4 v[{L+4*i}:{L+4*i+3}], v{4+i//4}, s[16:17] offset:{1152*(i%4)}")
e("s_mov_b64 exec, -1")
e("v_lshrrev_b32 v6, 1, v3")
e("v_and_b32 v7, 1, v6")
e("v_lshlrev_b32 v7, 4, v7")
e("s_mov_b32 s29, 0xffff")
e("v_lshlrev_b32 v7, v7, s29") if False else e("v_mov_b32 v8, 0xffff\nv_lshlrev_b32 v7, v7, v8")
e("v_lshrrev_b32 v8, 1, v6")
for r in range(4):
    e(f"v_cmp_eq_u32 vcc, {r}, v8\ns_nop 1\nv_cndmask_b32 v{12+r}, 0, v7, vcc")
e("v_and_b32 v8, 1, v3")
e("v_lshlrev_b32 v8, 5, v8")
e("v_lshl_add_u32 v8, v2, 3, v8")
e("v_add_u32 v8, v8, v6")
e("v_lshlrev_b32 v8, 5, v8")
e("v_and_b32 v9, 12, v3")
e("v_add_u32 v9, v9, v2")
e("s_lshl_b32 s27, s3, 4")
e("v_add_u32 v9, s27, v9")
e("v_mul_u32_u24 v9, 9216, v9")
e("v_and_b32 v10, 3, v3")
e("v_lshl_add_u32 v9, v10, 4, v9")
e("s_lshl_b32 s27, s24, 6\ns_add_u32 s27, s27, %d"%PART)
e("v_add_u32 v9, s27, v9")
e("s_mov_b32 s30, 0xffff")
e("s_waitcnt vmcnt(0)")
B=64
for s in range(8):
    for r in range(4):
        a=(2*r-s)%8; b=(2*r+1-s)%8
        e(f"v_bfi_b32 v{B+4*s+r}, s30, v{L+4*a+r}, v{L+4*b+r}")
e("s_barrier")
e("ds_read_b128 v[16:19], v8\nds_read_b128 v[20:23], v8 offset:16")
e("s_mov_b32 s31, 0xbfb8aa3b")
e("s_waitcnt lgkmcnt(0)")
e("v_add_f32 v16, v16, v17\nv_add_f32 v20, v20, v21\nv_add_f32 v16, v16, v18\nv_add_f32 v20, v20, v22")
e("v_cvt_pk_bf16_f32 v16, v16, v20")
e("v_and_b32 v20, 0xffff0000, v16")
e("v_lshlrev_b32 v16, 16, v16")
e("v_mul_f32 v17, s31, v16")
e("v_exp_f32 v17, v17")
e("s_nop 0")
e("v_add_f32 v17, 1.0, v17")
e("v_rcp_f32 v17, v17")
e("s_nop 0")
e("v_mul_f32 v16, v16, v17")
e("v_cvt_pk_bf16_f32 v16, v16, v16")
e("v_and_b32 v16, 0xffff0000, v16")
e("v_mul_f32 v16, v16, v20")
e("v_cvt_pk_bf16_f32 v16, v16, v16")
e("s_nop 1")
A=96
for s in range(8):
    for r in range(4):
        if s==0: e(f"v_and_b32 v{A+r}, v16, v{12+r}")
        else: e(f"v_and_b32_dpp v{A+4*s+r}, v16, v{12+r} row_ror:{2*s}{DPP}")
e("s_nop 1")
for s in range(8):
    c="0" if s==0 else "v[24:27]"
    e(f"v_mfma_f32_16x16x32_bf16 v[24:27], v[{A+4*s}:{A+4*s+3}], v[{B+4*s}:{B+4*s+3}], {c}")
e("s_mov_b32 exec_lo, s28\ns_mov_b32 exec_hi, s28")
e("s_nop 7")
e("global_store_dwordx4 v9, v[24:27], s[10:11]")
e("L2_end:\ns_endpgm")
e(desc("k2_kernel",208))

start("k3_kernel")
e("s_cmp_ge_u32 s2, 72\ns_cbranch_scc1 L3_end")
e("s_load_dwordx2 s[4:5], s[0:1], 0")
e("s_load_dwordx2 s[8:9], s[0:1], 40")
e("s_load_dwordx2 s[10:11], s[0:1], 56")
e("s_mul_i32 s3, s2, 9216\ns_add_u32 s3, s3, %d"%PART)
e("v_lshl_add_u32 v1, v0, 4, s3")
e("v_add_u32 v2, 4096, v1\nv_add_u32 v3, 8192, v1")
e("s_waitcnt lgkmcnt(0)")
P=32
for i in range(9):
    e(f"global_load_dwordx4 v[{P+4*i}:{P+4*i+3}], v{1+i//4}, s[10:11] offset:{1024*(i%4)}")
gather_top2(12)
e("v_bfe_u32 v4, v0, 4, 1")
e("v_and_b32 v5, 3, v0")
e("v_lshl_add_u32 v4, v5, 3, v4")
e("s_lshr_b32 s24, s2, 2\ns_lshl_b32 s24, s24, 5\ns_and_b32 s25, s2, 3\ns_lshl_b32 s25, s25, 1\ns_add_u32 s24, s24, s25")
e("v_add_lshl_u32 v4, v4, s24, 1")
e("v_cmp_gt_u32 vcc, 32, v0")
e("v_mov_b32 v5, s23\nv_mov_b32 v6, s22\nv_mov_b32 v7, s21\nv_mov_b32 v8, s20")
e("v_cndmask_b32 v5, v5, v6, vcc\nv_cndmask_b32 v7, v7, v8, vcc")
e("v_add_u32 v4, v4, v5")
e("global_load_ushort v10, v4, s[4:5]")
e("v_ashrrev_i32 v8, 31, v7")
e("v_not_b32 v8, v8")
e("v_or_b32 v8, 0x80000000, v8")
e("v_xor_b32 v7, v7, v8")
e("v_and_b32 v7, 0xffff0000, v7")
e("v_mul_f32 v7, 0xbfb8aa3b, v7")
e("v_exp_f32 v7, v7\ns_nop 0\nv_add_f32 v7, 1.0, v7\nv_rcp_f32 v7, v7\ns_nop 0")
e("v_cvt_pk_bf16_f32 v7, v7, v7\nv_and_b32 v7, 0xffff0000, v7")
for i in range(1,9):
    for k in range(4): e(f"v_add_f32 v{P+k}, v{P+k}, v{P+4*i+k}")
e("s_nop 1")
e(f"v_permlane32_swap_b32 v{P}, v{P+1}")
e(f"v_permlane32_swap_b32 v{P+2}, v{P+3}")
e("s_nop 1")
e(f"v_add_f32 v{P}, v{P}, v{P+1}\nv_add_f32 v{P+2}, v{P+2}, v{P+3}")
e("s_nop 1")
e(f"v_permlane16_swap_b32 v{P}, v{P+2}")
e("s_nop 1")
e(f"v_add_f32 v{P}, v{P}, v{P+2}")
e("s_nop 1")
e(f"v_add_f32_dpp v{P}, v{P}, v{P} row_ror:4{DPP}")
e("s_nop 1")
e(f"v_add_f32_dpp v{P}, v{P}, v{P} row_ror:8{DPP}")
e(f"v_cvt_pk_bf16_f32 v{P}, v{P}, v{P}\nv_and_b32 v{P}, 0xffff0000, v{P}")
e(f"v_mul_f32 v{P}, v{P}, v7")
e(f"v_cvt_pk_bf16_f32 v{P}, v{P}, v{P}\nv_and_b32 v{P}, 0xffff0000, v{P}")
e("s_waitcnt vmcnt(0)")
e("v_lshlrev_b32 v10, 16, v10")
e(f"v_fma_f32 v{P}, v10, 0, v{P}")
e(f"v_add_f32 v{P}, v10, v{P}")
e(f"v_cvt_pk_bf16_f32 v{P}, v{P}, v{P}")
e("s_mov_b32 exec_lo, 0x000f000f\ns_mov_b32 exec_hi, 0x000f000f")
e(f"global_store_short v4, v{P}, s[8:9]")
e("L3_end:\ns_endpgm")
e(desc("k3_kernel",72))
if extra:
    start("k4_kernel")
    e("s_endpgm")
    e(desc("k4_kernel",8))
print("\n".join(o))
```

```python
import subprocess, sys, re
base=subprocess.run(["python3","gen1.py","1"],capture_output=True,text=True).stdout
def stamp(slot):
    return f"""s_memrealtime s[40:41]
s_load_dwordx2 s[42:43], s[0:1], 56
s_cmp_lg_u32 s2, 0
s_cbranch_scc1 Lst{slot}
s_waitcnt lgkmcnt(0)
s_add_u32 s42, s42, 0x8000000
s_addc_u32 s43, s43, 0
v_mov_b32 v2, s40
v_mov_b32 v3, s41
v_mov_b32 v1, {slot*8}
global_store_dwordx2 v1, v[2:3], s[42:43]
s_waitcnt vmcnt(0)
Lst{slot}:
s_waitcnt lgkmcnt(0)
"""
for var,(a,b) in {"A":(0,0),"B":(1,0),"C":(2,1),"D":(3,2)}.items():
    s=base
    for i,k in enumerate(("k1_kernel","k2_kernel","k3_kernel")):
        s=s.replace(f"{k}:\n",f"{k}:\n"+stamp(i))
    k4=f"""s_memrealtime s[40:41]
s_cmp_lg_u32 s2, 0
s_cbranch_scc1 L4end
s_load_dwordx2 s[42:43], s[0:1], 56
s_waitcnt lgkmcnt(0)
s_add_u32 s42, s42, 0x8000000
s_addc_u32 s43, s43, 0
s_load_dwordx8 s[44:51], s[42:43], 0
s_waitcnt lgkmcnt(0)
s_mov_b32 s50, s40
s_sub_u32 s52, s{44+2*a}, s{44+2*b}
s_add_u32 s52, s52, 5000
s_min_u32 s52, s52, 20000
L4loop:
s_memrealtime s[54:55]
s_waitcnt lgkmcnt(0)
s_sub_u32 s56, s54, s44
s_cmp_lt_u32 s56, s52
s_cbranch_scc1 L4loop
L4end:
s_endpgm"""
    s=s.replace("k4_kernel:\ns_endpgm","k4_kernel:\n"+k4)
    open(f"cal{var}.s","w").write(s)
```

```python
import sys,re
def conv(s):
    out=[]
    for ln in s.split("\n"):
        m=re.match(r"\s*;STAMP (\d+)",ln)
        if m:
            k=int(m.group(1)); out.append(f"s_memrealtime s[{64+2*k}:{65+2*k}]"); continue
        m=re.match(r"\s*;STAMPINIT",ln)
        if m:
            for k in range(1,8): out.append(f"s_mov_b64 s[{64+2*k}:{65+2*k}], 0")
            out.append("s_memrealtime s[64:65]")
            out.append("s_mov_b64 s[84:85], s[0:1]\ns_mov_b32 s86, s2\nv_lshrrev_b32 v1, 6, v0\ns_nop 0\nv_readfirstlane_b32 s87, v1")
            continue
        m=re.match(r"\s*;STAMPOUT (\d+)",ln)
        if m:
            base=int(m.group(1))
            out.append("s_load_dwordx2 s[82:83], s[84:85], 56\ns_mov_b64 exec, -1\ns_waitcnt lgkmcnt(0)")
            out.append("s_add_u32 s82, s82, 0x8000000\ns_addc_u32 s83, s83, 0")
            out.append(f"s_lshl_b32 s80, s86, 3\ns_add_u32 s80, s80, s87\ns_add_u32 s80, s80, {base}\ns_lshl_b32 s80, s80, 6")
            out.append("v_mov_b32 v1, 0")
            for k in range(16): out.append(f"v_writelane_b32 v1, s{64+k}, {k}")
            out.append("v_mbcnt_lo_u32_b32 v0, -1, 0\nv_mbcnt_hi_u32_b32 v0, -1, v0\nv_lshl_add_u32 v0, v0, 2, s80")
            out.append("s_mov_b64 exec, 0xffff\nglobal_store_dword v0, v1, s[82:83]")
            continue
        out.append(ln)
    return "\n".join(out)
if __name__=="__main__":
    print(conv(open(sys.argv[1]).read()))
```

```python
import sys, argparse
ap=argparse.ArgumentParser()
ap.add_argument("--stamps",action="store_true")
ap.add_argument("--pre",type=int,default=2)
ap.add_argument("--early",type=int,default=0)
ap.add_argument("--b0",type=int,default=1)
ap.add_argument("--ostage",type=int,default=0)
ap.add_argument("--nob",type=int,default=0)
ap.add_argument("--thr",type=int,default=3)
ap.add_argument("--dcnt",type=int,default=6)
ap.add_argument("--xfl",default="nt")
ap.add_argument("--wfl",default="nt")
ap.add_argument("--ofl",default="sc1")
ap.add_argument("--local",type=int,default=1)
ap.add_argument("--pad",type=int,default=0)
A=ap.parse_args()
NAME="standalone__moe_arch_mod__prompt"
HDR=open('cdna_kernels/%s.s.ref'%NAME).read().split('; Override launch')[0]
CA=4096; CB=8192; LVL2=16384; EXCH=0x8000; PART=0x40000
LMSG=0; LCNT=32; LXS=64; LRED=1024
SPIN=1<<15
o=[]
def e(s): o.append(s)
def st(k):
    if A.stamps: e(f";STAMP {k}")
def stout():
    if A.stamps: e(";STAMPOUT 0")
DPP=" row_mask:0xf bank_mask:0xf"
def merge_dpp(a1,a2,m,ctrl,rowmask=0xf):
    d=f" {ctrl} row_mask:{rowmask:#x} bank_mask:0xf"
    e("s_nop 0")
    e(f"v_min_u32_dpp v{m}, v{a1}, v{a1}{d}")
    e(f"v_max_u32_dpp v{a2}, v{a2}, v{a2}{d}")
    e(f"v_max_u32_dpp v{a1}, v{a1}, v{a1}{d}")
    e(f"v_max_u32 v{a2}, v{a2}, v{m}")
T=92
def tags(sTA):
    e(f"s_and_b32 s{T}, s{sTA}, 0x3ff")
    e(f"s_lshr_b32 s{T+1}, s{sTA}, 10\ns_add_u32 s{T+1}, s{T+1}, s{sTA}\ns_and_b32 s{T+1}, s{T+1}, 0x3ff")
    e(f"s_lshr_b32 s{T+2}, s{sTA}, 20\ns_add_u32 s{T+2}, s{T+2}, s{sTA}\ns_and_b32 s{T+2}, s{T+2}, 0x3ff")
    e(f"s_mul_i32 s{T+3}, s{sTA}, 0x9e3779b1\ns_lshr_b32 s{T+3}, s{T+3}, 22")
def B0():
    if A.b0: e("s_barrier")

e(HDR.rstrip())
e("; @launch grid=(256,1,1) block=(704,1,1) lds=7168")
e('.amdgcn_target "amdgcn-amd-amdhsa--gfx950"\n.text')
K=NAME+"_kernel"
e(f".globl {K}\n.p2align 8\n.type {K},@function\n{K}:")
if A.stamps: e(";STAMPINIT")
if A.pad: e("s_memrealtime s[88:89]")
e("s_load_dwordx16 s[4:19], s[0:1], 0")
e("v_lshrrev_b32 v1, 6, v0")
e("s_cmp_ge_u32 s2, 256\ns_cbranch_scc1 L_end")
e("v_readfirstlane_b32 s3, v1")
e("v_and_b32 v0, 63, v0")
e("s_lshr_b32 s20, s2, 3\ns_mul_i32 s21, s20, 43\ns_lshr_b32 s21, s21, 7")
e("s_mul_i32 s22, s21, 3\ns_sub_u32 s22, s20, s22")
e("s_and_b32 s23, s2, 7")
e("s_cmp_eq_u32 s3, 0\ns_cbranch_scc1 L_router")
e("v_lshrrev_b32 v2, 4, v0")
e("v_and_b32 v3, 15, v0")
e("s_mul_i32 s24, s23, 9\ns_add_u32 s21, s21, s24")
e("s_cmp_ge_u32 s2, 216\ns_cbranch_scc1 L_red")
e("s_cmp_ge_u32 s3, 7\ns_cbranch_scc1 L_down")

e("s_mul_i32 s24, s22, 192\ns_lshl_b32 s25, s3, 5\ns_add_u32 s24, s24, s25\ns_sub_u32 s24, s24, 32")
e("v_lshl_add_u32 v4, v2, 3, s24")
e("s_movk_i32 s26, 9216")
e("v_mul_lo_u32 v6, v4, s26")
e("v_and_b32 v5, 7, v3")
e("v_lshl_add_u32 v6, v5, 4, v6")
e("s_lshl_b32 s27, s21, 7")
e("v_add_u32 v6, s27, v6")
e("v_mov_b32 v7, 0")
e("v_cmp_gt_u32 vcc, 8, v3")
e("s_mov_b32 s28, 9216\ns_mov_b32 s29, 0")
e("s_waitcnt lgkmcnt(0)")
st(1)
e("v_mov_b32 v8, s10\nv_mov_b32 v9, s11\nv_mov_b32 v4, s8\nv_mov_b32 v5, s9")
e("v_cndmask_b32 v8, v8, v4, vcc\nv_cndmask_b32 v9, v9, v5, vcc")
e("v_lshl_add_u64 v[8:9], v[6:7], 0, v[8:9]")
L=64; F=32; XA=16
def guload(i):
    e(f"global_load_dwordx4 v[{L+4*i}:{L+4*i+3}], v[8:9], off {A.wfl}")
    if i<7: e("v_lshl_add_u64 v[8:9], s[28:29], 0, v[8:9]")
B0()
for i in range(min(A.thr,8)): guload(i)
for k in range(16): e(f"v_mov_b32 v{XA+k}, 0")
e("v_and_b32 v4, 7, v3")
e("v_lshl_add_u32 v4, v4, 3, v2")
e("v_lshlrev_b32 v4, 4, v4")
e("v_and_b32 v5, 8, v3")
e("v_add_u32 v4, v4, v5")
e(f"s_lshl_b32 s25, s3, 10\ns_add_u32 s25, s25, {LRED-1024}")
e("v_add_u32 v11, s25, v4")
e("v_and_b32 v12, 1, v3")
e("v_mul_u32_u24 v12, 384, v12")
e("v_lshl_add_u32 v12, v2, 4, v12")
e(f"s_lshl_b32 s25, s3, 6\ns_add_u32 s25, s25, {LXS-64}")
e("v_add_u32 v12, s25, v12")
e("s_mov_b32 s30, 0x05040100\ns_mov_b32 s31, 0x07060302")
e("v_mov_b32 v13, 0\nv_mov_b32 v14, 1")
def perms(r):
    for j in range(4):
        a=L+8*r+j; b=L+8*r+4+j
        e(f"v_perm_b32 v{F+8*j+r}, v{b}, v{a}, s30")
        e(f"v_perm_b32 v{F+8*j+4+r}, v{b}, v{a}, s31")
done=0
for i in range(A.thr,8):
    e(f"s_waitcnt vmcnt({A.thr-1})")
    guload(i)
    if i==7: e(f"s_mov_b64 exec, 1\nds_add_u32 v13, v14 offset:{LCNT}\ns_mov_b64 exec, -1")
    arrived=i-A.thr+1
    while 2*done+2<=arrived: perms(done); done+=1
if A.thr>=8: e(f"s_mov_b64 exec, 1\nds_add_u32 v13, v14 offset:{LCNT}\ns_mov_b64 exec, -1")
st(2)
e("s_barrier")
for r in range(done,4):
    e(f"s_waitcnt vmcnt({6-2*r})")
    perms(r)
st(3)
e("s_barrier")
for jj in range(4):
    m=0x00030003<<(4*jj)
    e(f"s_mov_b32 exec_lo, {m:#x}\ns_mov_b32 exec_hi, {m:#x}")
    e(f"ds_read_b128 v[{XA+4*jj}:{XA+4*jj+3}], v12")
e("s_mov_b64 exec, -1")
st(4)
DA=64; DB=68
for jj in range(4):
    if not A.stamps or True: e(f"s_waitcnt lgkmcnt({0 if A.stamps else 3-jj})")
    for D,j in ((DA,jj),(DB,jj+4)):
        c="0" if jj==0 else f"v[{D}:{D+3}]"
        e(f"v_mfma_f32_16x16x32_bf16 v[{D}:{D+3}], v[{XA+4*jj}:{XA+4*jj+3}], v[{F+4*j}:{F+4*j+3}], {c}")
st(5)
e("s_nop 7")
e(f"ds_write2_b64 v11, v[{DA}:{DA+1}], v[{DB}:{DB+1}] offset0:0 offset1:8")
e("s_waitcnt lgkmcnt(0)")
e("s_barrier")
st(6)
stout()
e("s_endpgm")

e("L_down:")
e("s_sub_u32 s24, s3, 7\ns_lshr_b32 s25, s24, 1\ns_and_b32 s24, s24, 1")
e("s_lshl_b32 s26, s21, 6\ns_lshl_b32 s27, s25, 5\ns_add_u32 s26, s26, s27")
e("v_lshl_add_u32 v4, v2, 3, s26")
e("v_mul_u32_u24 v4, 1152, v4")
e("v_lshl_add_u32 v4, v3, 4, v4")
e("s_mul_i32 s27, s22, 384\ns_lshl_b32 s28, s24, 8\ns_add_u32 s27, s27, s28")
e("v_add_u32 v4, s27, v4")
e("v_add_u32 v5, 4608, v4")
e("s_cmp_eq_u32 s24, 1")
e("s_cselect_b32 s28, 0x00ff00ff, -1")
e("v_lshrrev_b32 v6, 1, v3")
e("v_and_b32 v7, 1, v6")
e("v_lshlrev_b32 v7, 4, v7")
e("v_mov_b32 v8, 0xffff\nv_lshlrev_b32 v7, v7, v8")
e("v_lshrrev_b32 v8, 1, v6")
for r in range(4):
    e(f"v_cmp_eq_u32 vcc, {r}, v8\ns_nop 1\nv_cndmask_b32 v{12+r}, 0, v7, vcc")
e("v_lshl_add_u32 v8, v2, 3, v6")
e(f"s_mul_i32 s29, s21, 3072\ns_lshl_b32 s30, s25, 9\ns_add_u32 s29, s29, s30\ns_add_u32 s29, s29, {EXCH}")
e("v_lshl_add_u32 v8, v8, 4, s29")
e("v_and_b32 v9, 12, v3")
e("v_add_u32 v9, v9, v2")
e("s_mul_i32 s29, s22, 24\ns_lshl_b32 s30, s24, 4\ns_add_u32 s29, s29, s30")
e("v_add_u32 v9, s29, v9")
e("v_mul_u32_u24 v9, 9216, v9")
e("v_and_b32 v10, 3, v3")
e("v_lshl_add_u32 v9, v10, 4, v9")
e(f"s_lshl_b32 s29, s21, 1\ns_add_u32 s29, s29, s25\ns_lshl_b32 s29, s29, 6\ns_add_u32 s29, s29, {PART}")
e("v_add_u32 v9, s29, v9")
e("v_and_b32 v10, 1, v3")
e("v_cmp_eq_u32 s[34:35], 1, v10")
e("v_mov_b32 v11, 0xfffffc00")
e("v_mov_b32 v10, 0")
e("s_waitcnt lgkmcnt(0)")
st(1)
L=32
def dnload(i): e(f"global_load_dwordx4 v[{L+4*i}:{L+4*i+3}], v{4+i//4}, s[12:13] offset:{1152*(i%4)} {A.wfl}")
B0()
e("s_mov_b32 s30, 0xffff")
e("s_mov_b32 s31, 0xbfb8aa3b")
if A.early:
    e("L_dwait:")
    e(f"s_sleep 1\nds_read_b32 v16, v10 offset:{LCNT}\ns_waitcnt lgkmcnt(0)\nv_cmp_gt_u32 vcc, {A.dcnt}, v16\ns_cbranch_vccnz L_dwait")
e("s_mov_b32 exec_lo, s28\ns_mov_b32 exec_hi, s28")
for i in range(A.early): dnload(i)
e("s_barrier")
for i in range(A.early,8): dnload(i)
e("s_mov_b64 exec, -1")
e(f"ds_read_b32 v16, v10 offset:{LMSG+8}")
st(2)
e("s_waitcnt lgkmcnt(0)")
e("v_readfirstlane_b32 s36, v16")
tags(36)
e("s_barrier")
e("s_barrier")
e("s_waitcnt vmcnt(0)")
st(3)
B=64
for s in range(8):
    for r in range(4):
        a=(2*r-s)%8; b=(2*r+1-s)%8
        e(f"v_bfi_b32 v{B+4*s+r}, s30, v{L+4*a+r}, v{L+4*b+r}")
e(f"s_mov_b32 s37, {SPIN}")
e("L_dpoll:")
for p in range(3): e(f"global_load_dwordx4 v[{16+4*p}:{19+4*p}], v8, s[18:19] offset:{1024*p} sc1")
e("s_sub_u32 s37, s37, 1")
e("s_waitcnt vmcnt(2)")
e(f"v_xor_b32 v28, s{T}, v16")
for k in range(1,4): e(f"v_bitop3_b32 v28, v{16+k}, s{T+k}, v28 bitop3:0xbe")
for p in (1,2):
    e(f"s_waitcnt vmcnt({2-p})")
    for k in range(4): e(f"v_bitop3_b32 v28, v{16+4*p+k}, s{T+k}, v28 bitop3:0xbe")
e("v_and_b32 v28, 0x3ff, v28")
e("v_cmp_ne_u32 vcc, 0, v28")
e("s_cbranch_scc1 L_dgo")
e("s_cbranch_vccnz L_dpoll")
e("L_dgo:")
st(4)
e("v_pk_add_f32 v[16:17], v[16:17], v[20:21]\nv_pk_add_f32 v[18:19], v[18:19], v[22:23]")
e("v_pk_add_f32 v[16:17], v[16:17], v[24:25]\nv_pk_add_f32 v[18:19], v[18:19], v[26:27]")
e("v_cndmask_b32 v16, v16, v17, s[34:35]\nv_cndmask_b32 v18, v18, v19, s[34:35]")
e("v_cvt_pk_bf16_f32 v16, v16, v18")
e("v_and_b32 v20, 0xffff0000, v16")
e("v_lshlrev_b32 v16, 16, v16")
e("v_mul_f32 v17, s31, v16")
e("v_exp_f32 v17, v17\ns_nop 0\nv_add_f32 v17, 1.0, v17\nv_rcp_f32 v17, v17\ns_nop 0")
e("v_mul_f32 v16, v16, v17")
e("v_cvt_pk_bf16_f32 v16, v16, v16")
e("v_and_b32 v16, 0xffff0000, v16")
e("v_mul_f32 v16, v16, v20")
e("v_cvt_pk_bf16_f32 v16, v16, v16")
e("s_nop 1")
AF=32
for s in range(8):
    for r in range(4):
        if s==0: e(f"v_and_b32 v{AF+r}, v16, v{12+r}")
        else: e(f"v_and_b32_dpp v{AF+4*s+r}, v16, v{12+r} row_ror:{2*s}{DPP}")
    if s>=1:
        c="0" if s==1 else "v[24:27]"
        e(f"v_mfma_f32_16x16x32_bf16 v[24:27], v[{AF+4*(s-1)}:{AF+4*(s-1)+3}], v[{B+4*(s-1)}:{B+4*(s-1)+3}], {c}")
e("s_nop 1")
e(f"v_mfma_f32_16x16x32_bf16 v[24:27], v[{AF+28}:{AF+31}], v[{B+28}:{B+31}], v[24:27]")
e("s_mov_b32 exec_lo, s28\ns_mov_b32 exec_hi, s28")
e("s_nop 5")
for k in range(4): e(f"v_and_or_b32 v{24+k}, v{24+k}, v11, s{T+k}")
e("global_store_dwordx4 v9, v[24:27], s[18:19] sc1")
st(5)
stout()
e("s_endpgm")

e("L_router:")
X=8; W=44
e("v_lshrrev_b32 v1, 3, v0")
e("v_and_b32 v2, 7, v0")
e("v_lshlrev_b32 v2, 4, v2")
e("s_lshl_b32 s24, s2, 3")
e("v_add_u32 v3, s24, v1")
e("v_mul_u32_u24 v4, 1152, v3")
e("v_add_u32 v4, v4, v2")
e("v_mov_b32 v7, 0")
e(f"ds_write_b32 v7, v7 offset:{LCNT}")
e("s_waitcnt lgkmcnt(0)")
st(1)
for i in range(9): e(f"global_load_dwordx4 v[{X+4*i}:{X+4*i+3}], v4, s[4:5] offset:{128*i} {A.xfl}")
e("global_load_dword v6, v7, s[18:19] sc1")
for i in range(9): e(f"global_load_dwordx4 v[{W+4*i}:{W+4*i+3}], v2, s[6:7] offset:{128*i}")
B0()
for k in range(4): e(f"v_mov_b32 v{80+k}, 0")
e("v_sub_u32 v5, 2047, v3")
e("s_mov_b32 s25, 0xffff0000")
e("s_movk_i32 s26, 0x207")
e(f"s_lshl_b32 s27, s23, 5\ns_add_u32 s27, s27, s20\ns_lshl_b32 s27, s27, 4\ns_add_u32 s27, s27, {CA}")
e("v_mov_b32 v101, s27")
e("s_getreg_b32 s31, hwreg(HW_REG_XCC_ID, 0, 4)")
e("s_mov_b32 s96, s4\ns_mov_b32 s97, s5\ns_mov_b32 s98, 2359296\ns_mov_b32 s99, 0x00020000")
e(f"s_and_b32 s30, s2, 63\ns_lshl_b32 s30, s30, 7\ns_add_u32 s30, s30, {LVL2}")
e("s_add_u32 s100, s18, s30\ns_addc_u32 s101, s19, 0")
e(f"s_mov_b32 m0, {LXS}")
e("v_subrev_u32 v102, 24, v0\nv_min_u32 v102, v102, v0\nv_lshlrev_b32 v102, 4, v102")
e("s_mul_i32 s30, s22, 384\nv_add_u32 v102, s30, v102")
e(f"s_lshl_b32 s30, s22, 4\ns_sub_u32 s30, s27, s30\ns_add_u32 s30, s30, {CB-CA}")
e("v_lshl_add_u32 v103, v0, 4, s30")
e("s_waitcnt vmcnt(9)")
e("v_readfirstlane_b32 s90, v6")
e("s_add_u32 s90, s90, 1\ns_mul_i32 s91, s90, 0x9e3779b1\ns_and_b32 s91, s91, 0xfffffff0\ns_or_b32 s31, s31, s91")
e("v_mov_b32 v86, s90\nv_mov_b32 v87, s31")
e(f"ds_write_b32 v7, v86 offset:{LMSG+8}")
for i in range(9):
    e(f"s_waitcnt vmcnt({8-i})")
    for k in range(4): e(f"v_dot2c_f32_bf16 v{80+k}, v{X+4*i+k}, v{W+4*i+k}")
st(2)
e("s_nop 2")
e("v_add_f32 v80, v80, v81\nv_add_f32 v82, v82, v83\ns_nop 0\nv_add_f32 v80, v80, v82")
for ctrl in ("quad_perm:[1,0,3,2]","quad_perm:[2,3,0,1]","row_half_mirror"):
    e("s_nop 1")
    e(f"v_add_f32_dpp v80, v80, v80 {ctrl}{DPP}")
e("v_cvt_pk_bf16_f32 v81, v80, v80")
e("v_cmp_u_f32 vcc, v80, v80")
e("v_ashrrev_i32 v82, 31, v81")
e("v_or_b32 v82, 0x80000000, v82")
e("v_xor_b32 v81, v81, v82")
e("v_cndmask_b32 v81, v81, 0, vcc")
e("v_bfi_b32 v83, s25, v81, v5")
e("s_nop 1")
e(f"v_min_u32_dpp v85, v83, v83 row_ror:8{DPP}")
e(f"v_max_u32_dpp v84, v83, v83 row_ror:8{DPP}")
e("s_nop 0")
merge_dpp(84,85,82,"row_bcast:15",0xa)
merge_dpp(84,85,82,"row_bcast:31",0xc)
e("s_mov_b32 exec_lo, 0\ns_mov_b32 exec_hi, 0x80000000")
e("global_store_dwordx4 v101, v[84:87], s[18:19]")
e("v_add_u32 v101, %d, v101"%(CB-CA))
if not A.nob: e("global_store_dwordx4 v101, v[84:87], s[18:19] sc1")
e("s_mov_b64 exec, -1")
e("s_waitcnt lgkmcnt(0)")
e("s_cmp_lt_u32 s2, 216\ns_cbranch_scc1 L_nob1")
e("s_barrier")
e("L_nob1:")
st(3)
e("v_readlane_b32 s28, v85, 63")
e("v_cmp_class_f32 vcc, v80, s26")
e("s_cbranch_vccnz L_fix")
e("L_fixed:")
if A.ostage==0:
    e("v_cmp_gt_u32 vcc, s28, v83")
    e("s_mov_b64 exec, vcc")
    for i in range(9): e(f"global_store_dwordx4 v4, v[{X+4*i}:{X+4*i+3}], s[14:15] offset:{128*i} {A.ofl}")
else:
    e("s_mov_b32 s28, 0")
e(f"s_mov_b32 s29, {SPIN}")
e("s_mov_b32 exec_lo, 0x00ffffff\ns_mov_b32 exec_hi, 0")
e("L_rpoll:")
e("s_load_dwordx16 s[32:47], s[100:101], 0 glc\ns_load_dwordx16 s[48:63], s[100:101], 64 glc")
e("s_sub_u32 s29, s29, 1")
e("s_cbranch_scc1 L_rto")
e("s_waitcnt lgkmcnt(0)")
for g in range(8):
    e(f"s_cmp_eq_u64 s[{34+4*g}:{35+4*g}], s[90:91]\ns_cbranch_scc0 L_rpoll")
e("L_rto:")
e("s_waitcnt lgkmcnt(0)")
st(4)
for g in range(1,8):
    e(f"s_min_u32 s34, s32, s{32+4*g}\ns_max_u32 s32, s32, s{32+4*g}\ns_max_u32 s33, s33, s{33+4*g}\ns_max_u32 s33, s33, s34")
e("s_and_b32 s34, s32, 0x7ff\ns_and_b32 s35, s33, 0x7ff")
e("s_sub_u32 s34, 2047, s34\ns_sub_u32 s35, 2047, s35")
e("s_mul_i32 s34, s34, 1152\ns_mul_i32 s35, s35, 1152")
e("s_cmp_ge_u32 s2, 216\ns_cbranch_scc1 L_rnf")
e("buffer_load_dwordx4 v102, s[96:99], s34 offen lds")
e("s_mov_b32 exec_lo, 0xff000000\ns_mov_b32 exec_hi, 0x0000ffff")
e("buffer_load_dwordx4 v102, s[96:99], s35 offen lds")
e("s_mov_b64 exec, 7")
e("global_load_dwordx2 v[62:63], v103, s[18:19] offset:8 sc1")
e("s_barrier")
e("s_waitcnt vmcnt(1)")
e("s_barrier")
st(5)
e("s_mov_b64 exec, -1")
e("v_cmp_le_u32 vcc, s28, v83")
e("v_cmp_gt_u32 s[36:37], s33, v83")
e("s_and_b64 exec, vcc, s[36:37]")
e("s_cbranch_execz L_nolate")
for i in range(9): e(f"global_store_dwordx4 v4, v[{X+4*i}:{X+4*i+3}], s[14:15] offset:{128*i} {A.ofl}")
e("s_waitcnt vmcnt(9)")
e("s_branch L_late")
e("L_nolate:")
e("s_waitcnt vmcnt(0)")
e("L_late:")
e("s_mov_b64 exec, 7")
e("v_xor_b32 v62, v62, v86\nv_xor_b32 v63, v63, v87\nv_or_b32 v62, v62, v63")
e("v_cmp_ne_u32 vcc, 0, v62")
e("s_mov_b64 exec, -1")
tags(90)
e("s_mul_i32 s24, s23, 9\ns_add_u32 s21, s21, s24")
e(f"v_lshlrev_b32 v1, 4, v0")
e(f"s_mul_i32 s24, s21, 3\ns_add_u32 s24, s24, s22\ns_lshl_b32 s24, s24, 10\ns_add_u32 s24, s24, {EXCH}")
e("v_add_u32 v2, s24, v1")
e("v_mov_b32 v3, 0xfffffc00")
e("s_barrier")
P=44
for w in range(6): e(f"ds_read_b128 v[{P+4*w}:{P+4*w+3}], v1 offset:{LRED+1024*w}")
for w in range(1,6):
    e(f"s_waitcnt lgkmcnt({0 if A.stamps else 5-w})")
    e(f"v_pk_add_f32 v[{P}:{P+1}], v[{P}:{P+1}], v[{P+4*w}:{P+4*w+1}]")
    e(f"v_pk_add_f32 v[{P+2}:{P+3}], v[{P+2}:{P+3}], v[{P+4*w+2}:{P+4*w+3}]")
for k in range(4): e(f"v_and_or_b32 v{P+k}, v{P+k}, v3, s{T+k}")
if A.local:
    e("s_cbranch_vccnz L_far")
    e(f"global_store_dwordx4 v2, v[{P}:{P+3}], s[18:19]")
    st(6)
    stout()
    e("s_endpgm")
    e("L_far:")
e(f"global_store_dwordx4 v2, v[{P}:{P+3}], s[18:19] sc1")
st(6)
stout()
e("s_endpgm")
e("L_rnf:")
e("s_mov_b64 exec, 1")
e("v_mov_b32 v60, s34\nv_mov_b32 v61, s35\nv_mov_b32 v62, s32\nv_mov_b32 v63, s33")
e(f"ds_write_b64 v7, v[60:61] offset:{LMSG}\nds_write_b64 v7, v[62:63] offset:{LMSG+16}")
e("s_cmp_lg_u32 s2, 255\ns_cbranch_scc1 L_nobump")
e("global_store_dword v7, v86, s[18:19] sc1")
e("L_nobump:")
e("s_waitcnt lgkmcnt(0)")
e("s_barrier")
e("s_mov_b64 exec, -1")
e("v_cmp_le_u32 vcc, s28, v83")
e("v_cmp_gt_u32 s[36:37], s33, v83")
e("s_and_b64 exec, vcc, s[36:37]")
e("s_cbranch_execz L_nolate2")
for i in range(9): e(f"global_store_dwordx4 v4, v[{X+4*i}:{X+4*i+3}], s[14:15] offset:{128*i} {A.ofl}")
e("L_nolate2:")
st(6)
stout()
e("s_endpgm")

e("L_red:")
e("s_cmp_eq_u32 s3, 3\ns_cbranch_scc1 L_lead")
e("s_cmp_ge_u32 s3, 3\ns_cbranch_scc1 L_end")
e("s_sub_u32 s24, s2, 216\ns_lshl_b32 s24, s24, 1\ns_add_u32 s24, s24, s3\ns_sub_u32 s24, s24, 1")
e("s_cmp_ge_u32 s24, 72\ns_cbranch_scc1 L_end")
e(f"s_mul_i32 s25, s24, 9216\ns_add_u32 s25, s25, {PART}")
e("v_lshl_add_u32 v1, v0, 4, s25")
e("v_add_u32 v2, 4096, v1\nv_add_u32 v3, 8192, v1")
e("v_bfe_u32 v4, v0, 4, 1")
e("v_and_b32 v5, 3, v0")
e("v_lshl_add_u32 v4, v5, 3, v4")
e("s_lshr_b32 s26, s24, 2\ns_lshl_b32 s26, s26, 5\ns_and_b32 s27, s24, 3\ns_lshl_b32 s27, s27, 1\ns_add_u32 s26, s26, s27")
e("v_add_lshl_u32 v4, v4, s26, 1")
e("v_lshrrev_b32 v5, 5, v0\nv_lshlrev_b32 v5, 2, v5")
e("v_mov_b32 v6, 0")
e("s_waitcnt lgkmcnt(0)")
st(1)
B0()
e("s_barrier")
e("s_barrier")
e(f"ds_read_b32 v8, v5 offset:{LMSG}\nds_read_b32 v7, v5 offset:{LMSG+16}\nds_read_b32 v9, v6 offset:{LMSG+8}")
e("s_waitcnt lgkmcnt(0)")
st(2)
e("v_add_u32 v4, v4, v8")
e("global_load_ushort v10, v4, s[4:5]")
e("v_readfirstlane_b32 s36, v9")
tags(36)
e("v_ashrrev_i32 v8, 31, v7\nv_not_b32 v8, v8\nv_or_b32 v8, 0x80000000, v8\nv_xor_b32 v7, v7, v8\nv_and_b32 v7, 0xffff0000, v7")
e("v_mul_f32 v7, 0xbfb8aa3b, v7")
e("v_exp_f32 v7, v7\ns_nop 0\nv_add_f32 v7, 1.0, v7\nv_rcp_f32 v7, v7\ns_nop 0")
e("v_cvt_pk_bf16_f32 v7, v7, v7\nv_and_b32 v7, 0xffff0000, v7")
e("s_waitcnt vmcnt(0)")
e("v_lshlrev_b32 v10, 16, v10")
e(f"s_mov_b32 s37, {SPIN}")
P=16
e("L_ppoll:")
for i in range(9): e(f"global_load_dwordx4 v[{P+4*i}:{P+4*i+3}], v{1+i//4}, s[18:19] offset:{1024*(i%4)} sc1")
e("s_sub_u32 s37, s37, 1")
e("s_waitcnt vmcnt(8)")
e(f"v_xor_b32 v11, s{T}, v{P}")
for k in range(1,4): e(f"v_bitop3_b32 v11, v{P+k}, s{T+k}, v11 bitop3:0xbe")
for i in range(1,9):
    e(f"s_waitcnt vmcnt({8-i})")
    for k in range(4): e(f"v_bitop3_b32 v11, v{P+4*i+k}, s{T+k}, v11 bitop3:0xbe")
    e(f"v_pk_add_f32 v[{P}:{P+1}], v[{P}:{P+1}], v[{P+4*i}:{P+4*i+1}]")
    e(f"v_pk_add_f32 v[{P+2}:{P+3}], v[{P+2}:{P+3}], v[{P+4*i+2}:{P+4*i+3}]")
e("v_and_b32 v11, 0x3ff, v11")
e("v_cmp_ne_u32 vcc, 0, v11")
e("s_cbranch_scc1 L_pgo")
e("s_cbranch_vccnz L_ppoll")
e("L_pgo:")
st(3)
e(f"v_permlane32_swap_b32 v{P}, v{P+1}")
e(f"v_permlane32_swap_b32 v{P+2}, v{P+3}")
e("s_nop 1")
e(f"v_add_f32 v{P}, v{P}, v{P+1}\nv_add_f32 v{P+2}, v{P+2}, v{P+3}")
e("s_nop 1")
e(f"v_permlane16_swap_b32 v{P}, v{P+2}")
e("s_nop 1")
e(f"v_add_f32 v{P}, v{P}, v{P+2}")
e("s_nop 1")
e(f"v_add_f32_dpp v{P}, v{P}, v{P} row_ror:4{DPP}")
e("s_nop 1")
e(f"v_add_f32_dpp v{P}, v{P}, v{P} row_ror:8{DPP}")
e(f"v_cvt_pk_bf16_f32 v{P}, v{P}, v{P}\nv_and_b32 v{P}, 0xffff0000, v{P}")
e(f"v_mul_f32 v{P}, v{P}, v7")
e(f"v_cvt_pk_bf16_f32 v{P}, v{P}, v{P}\nv_and_b32 v{P}, 0xffff0000, v{P}")
e(f"v_fma_f32 v{P}, v10, 0, v{P}")
e(f"v_add_f32 v{P}, v10, v{P}")
e(f"v_cvt_pk_bf16_f32 v{P}, v{P}, v{P}")
e("s_mov_b32 exec_lo, 0x000f000f\ns_mov_b32 exec_hi, 0x000f000f")
e(f"global_store_short v4, v{P}, s[14:15]")
st(4)
stout()
if A.pad:
    e("s_cmp_lg_u32 s24, 0\ns_cbranch_scc1 L_end")
    e(f"L_pad:\ns_memrealtime s[40:41]\ns_waitcnt lgkmcnt(0)\ns_sub_u32 s42, s40, s88\ns_cmp_lt_u32 s42, {A.pad}\ns_cbranch_scc1 L_pad")
e("L_end:\ns_endpgm")
e("L_lead:")
e("s_cmp_lt_u32 s2, 240\ns_cbranch_scc1 L_end")
e("s_cmp_ge_u32 s2, 248\ns_cselect_b32 s24, 1, 2\ns_lshl_b32 s24, s24, 12")
e("s_lshl_b32 s25, s23, 9\ns_add_u32 s24, s24, s25")
e("v_and_b32 v1, 31, v0")
e("v_lshl_add_u32 v1, v1, 4, s24")
e(f"s_lshl_b32 s25, s23, 4\ns_add_u32 s25, s25, {LVL2}")
e("v_lshl_add_u32 v2, v0, 7, s25")
e("v_mov_b32 v6, 0")
e("s_waitcnt lgkmcnt(0)")
st(1)
B0()
e("s_barrier")
e(f"ds_read_b32 v9, v6 offset:{LMSG+8}")
e("s_waitcnt lgkmcnt(0)")
e("v_readfirstlane_b32 s36, v9")
e("s_mul_i32 s37, s36, 0x9e3779b1\ns_and_b32 s37, s37, 0xfffffff0")
e(f"s_mov_b32 s29, {SPIN}")
e("L_lpoll:")
e("global_load_dwordx4 v[8:11], v1, s[18:19] sc1")
e("s_sub_u32 s29, s29, 1")
e("s_waitcnt vmcnt(0)")
e("v_xor_b32 v12, s37, v11\nv_and_b32 v12, 0xfffffff0, v12")
e("v_bitop3_b32 v12, v10, s36, v12 bitop3:0xbe")
e("v_cmp_ne_u32 vcc, 0, v12")
e("s_cbranch_scc1 L_end")
e("s_cbranch_vccnz L_lpoll")
st(2)
for ctrl in ("row_ror:8","row_ror:4","row_ror:2","row_ror:1"): merge_dpp(8,9,12,ctrl)
e("v_mov_b32 v12, v8\nv_mov_b32 v13, v9\nv_mov_b32 v11, s37")
e("s_nop 0")
e("v_permlane16_swap_b32 v8, v12\nv_permlane16_swap_b32 v9, v13")
e("s_nop 1")
e("v_min_u32 v14, v8, v12\nv_max_u32 v8, v8, v12\nv_max3_u32 v9, v9, v13, v14")
e("global_store_dwordx4 v2, v[8:11], s[18:19] sc1")
st(3)
stout()
e("s_endpgm")
X=8
e("L_fix:")
e("s_mov_b32 s30, 0x7f807f80\ns_mov_b32 s36, 0x00400040")
for k in range(36):
    e(f"v_and_b32 v88, s30, v{X+k}\nv_add_u32 v88, 0x00800080, v88\nv_lshrrev_b32 v88, 9, v88\nv_and_or_b32 v{X+k}, v88, s36, v{X+k}")
e("s_branch L_fixed")
e(f""".section .rodata,"a"
.p2align 6
.amdhsa_kernel {K}
  .amdhsa_next_free_vgpr 104
  .amdhsa_next_free_sgpr 102
  .amdhsa_accum_offset 104
  .amdhsa_group_segment_fixed_size 0
  .amdhsa_kernarg_size 64
  .amdhsa_user_sgpr_count 2
  .amdhsa_user_sgpr_kernarg_segment_ptr 1
  .amdhsa_system_sgpr_workgroup_id_x 1
  .amdhsa_float_denorm_mode_32 3
.end_amdhsa_kernel""")
s="\n".join(o)
if A.stamps:
    import stampify
    s=stampify.conv(s).replace("s_lshl_b32 s80, s86, 3","s_lshl_b32 s80, s86, 4")
print(s)
```

```python
import sys, argparse
ap=argparse.ArgumentParser()
ap.add_argument("--stamps",action="store_true")
ap.add_argument("--pre",type=int,default=2)
ap.add_argument("--early",type=int,default=0)
ap.add_argument("--b0",type=int,default=1)
ap.add_argument("--ostage",type=int,default=0)
ap.add_argument("--nob",type=int,default=0)
ap.add_argument("--ffl",default="")
ap.add_argument("--afl",default="")
ap.add_argument("--thr",type=int,default=3)
ap.add_argument("--dcnt",type=int,default=6)
ap.add_argument("--xfl",default="nt")
ap.add_argument("--wfl",default="nt")
ap.add_argument("--ofl",default="sc1")
ap.add_argument("--local",type=int,default=1)
ap.add_argument("--pad",type=int,default=0)
A=ap.parse_args()
NAME="standalone__moe_arch_mod__prompt"
HDR=open('cdna_kernels/%s.s.ref'%NAME).read().split('; Override launch')[0]
CA=4096; CB=8192; LVL2=16384; EXCH=0x8000; PART=0x40000
LMSG=0; LCNT=32; LXS=64; LRED=1024
SPIN=1<<15
o=[]
def e(s): o.append(s)
def st(k):
    if A.stamps: e(f";STAMP {k}")
def stout():
    if A.stamps: e(";STAMPOUT 0")
DPP=" row_mask:0xf bank_mask:0xf"
def merge_dpp(a1,a2,m,ctrl,rowmask=0xf):
    d=f" {ctrl} row_mask:{rowmask:#x} bank_mask:0xf"
    e("s_nop 0")
    e(f"v_min_u32_dpp v{m}, v{a1}, v{a1}{d}")
    e(f"v_max_u32_dpp v{a2}, v{a2}, v{a2}{d}")
    e(f"v_max_u32_dpp v{a1}, v{a1}, v{a1}{d}")
    e(f"v_max_u32 v{a2}, v{a2}, v{m}")
T=92
def tags(sTA):
    e(f"s_and_b32 s{T}, s{sTA}, 0x3ff")
    e(f"s_lshr_b32 s{T+1}, s{sTA}, 10\ns_add_u32 s{T+1}, s{T+1}, s{sTA}\ns_and_b32 s{T+1}, s{T+1}, 0x3ff")
    e(f"s_lshr_b32 s{T+2}, s{sTA}, 20\ns_add_u32 s{T+2}, s{T+2}, s{sTA}\ns_and_b32 s{T+2}, s{T+2}, 0x3ff")
    e(f"s_mul_i32 s{T+3}, s{sTA}, 0x9e3779b1\ns_lshr_b32 s{T+3}, s{T+3}, 22")
def B0():
    if A.b0: e("s_barrier")

e(HDR.rstrip())
e("; @launch grid=(256,1,1) block=(704,1,1) lds=7168")
e('.amdgcn_target "amdgcn-amd-amdhsa--gfx950"\n.text')
K=NAME+"_kernel"
e(f".globl {K}\n.p2align 8\n.type {K},@function\n{K}:")
if A.stamps: e(";STAMPINIT")
if A.pad: e("s_memrealtime s[88:89]")
e("s_load_dwordx16 s[4:19], s[0:1], 0")
e("v_lshrrev_b32 v1, 6, v0")
e("s_cmp_ge_u32 s2, 256\ns_cbranch_scc1 L_end")
e("v_readfirstlane_b32 s3, v1")
e("v_and_b32 v0, 63, v0")
e("s_lshr_b32 s20, s2, 3\ns_mul_i32 s21, s20, 43\ns_lshr_b32 s21, s21, 7")
e("s_mul_i32 s22, s21, 3\ns_sub_u32 s22, s20, s22")
e("s_and_b32 s23, s2, 7")
e("s_cmp_eq_u32 s3, 0\ns_cbranch_scc1 L_router")
e("v_lshrrev_b32 v2, 4, v0")
e("v_and_b32 v3, 15, v0")
e("s_mul_i32 s24, s23, 9\ns_add_u32 s21, s21, s24")
e("s_cmp_ge_u32 s2, 216\ns_cbranch_scc1 L_red")
e("s_cmp_ge_u32 s3, 7\ns_cbranch_scc1 L_down")

e("s_mul_i32 s24, s22, 192\ns_lshl_b32 s25, s3, 5\ns_add_u32 s24, s24, s25\ns_sub_u32 s24, s24, 32")
e("v_lshl_add_u32 v4, v2, 3, s24")
e("s_movk_i32 s26, 9216")
e("v_mul_lo_u32 v6, v4, s26")
e("v_and_b32 v5, 7, v3")
e("v_lshl_add_u32 v6, v5, 4, v6")
e("s_lshl_b32 s27, s21, 7")
e("v_add_u32 v6, s27, v6")
e("v_mov_b32 v7, 0")
e("v_cmp_gt_u32 vcc, 8, v3")
e("s_mov_b32 s28, 9216\ns_mov_b32 s29, 0")
e("s_waitcnt lgkmcnt(0)")
st(1)
e("v_mov_b32 v8, s10\nv_mov_b32 v9, s11\nv_mov_b32 v4, s8\nv_mov_b32 v5, s9")
e("v_cndmask_b32 v8, v8, v4, vcc\nv_cndmask_b32 v9, v9, v5, vcc")
e("v_lshl_add_u64 v[8:9], v[6:7], 0, v[8:9]")
L=64; F=32; XA=16
def guload(i):
    e(f"global_load_dwordx4 v[{L+4*i}:{L+4*i+3}], v[8:9], off {A.wfl}")
    if i<7: e("v_lshl_add_u64 v[8:9], s[28:29], 0, v[8:9]")
B0()
for i in range(min(A.thr,8)): guload(i)
for k in range(16): e(f"v_mov_b32 v{XA+k}, 0")
e("v_and_b32 v4, 7, v3")
e("v_lshl_add_u32 v4, v4, 3, v2")
e("v_lshlrev_b32 v4, 4, v4")
e("v_and_b32 v5, 8, v3")
e("v_add_u32 v4, v4, v5")
e(f"s_lshl_b32 s25, s3, 10\ns_add_u32 s25, s25, {LRED-1024}")
e("v_add_u32 v11, s25, v4")
e("v_and_b32 v12, 1, v3")
e("v_mul_u32_u24 v12, 384, v12")
e("v_lshl_add_u32 v12, v2, 4, v12")
e(f"s_lshl_b32 s25, s3, 6\ns_add_u32 s25, s25, {LXS-64}")
e("v_add_u32 v12, s25, v12")
e("s_mov_b32 s30, 0x05040100\ns_mov_b32 s31, 0x07060302")
e("v_mov_b32 v13, 0\nv_mov_b32 v14, 1")
def perms(r):
    for j in range(4):
        a=L+8*r+j; b=L+8*r+4+j
        e(f"v_perm_b32 v{F+8*j+r}, v{b}, v{a}, s30")
        e(f"v_perm_b32 v{F+8*j+4+r}, v{b}, v{a}, s31")
done=0
for i in range(A.thr,8):
    e(f"s_waitcnt vmcnt({A.thr-1})")
    guload(i)
    if i==7: e(f"s_mov_b64 exec, 1\nds_add_u32 v13, v14 offset:{LCNT}\ns_mov_b64 exec, -1")
    arrived=i-A.thr+1
    while 2*done+2<=arrived: perms(done); done+=1
if A.thr>=8: e(f"s_mov_b64 exec, 1\nds_add_u32 v13, v14 offset:{LCNT}\ns_mov_b64 exec, -1")
st(2)
e("s_barrier")
for r in range(done,4):
    e(f"s_waitcnt vmcnt({6-2*r})")
    perms(r)
st(3)
e("s_barrier")
for jj in range(4):
    m=0x00030003<<(4*jj)
    e(f"s_mov_b32 exec_lo, {m:#x}\ns_mov_b32 exec_hi, {m:#x}")
    e(f"ds_read_b128 v[{XA+4*jj}:{XA+4*jj+3}], v12")
e("s_mov_b64 exec, -1")
st(4)
DA=64; DB=68
for jj in range(4):
    if not A.stamps or True: e(f"s_waitcnt lgkmcnt({0 if A.stamps else 3-jj})")
    for D,j in ((DA,jj),(DB,jj+4)):
        c="0" if jj==0 else f"v[{D}:{D+3}]"
        e(f"v_mfma_f32_16x16x32_bf16 v[{D}:{D+3}], v[{XA+4*jj}:{XA+4*jj+3}], v[{F+4*j}:{F+4*j+3}], {c}")
st(5)
e("s_nop 7")
e(f"ds_write2_b64 v11, v[{DA}:{DA+1}], v[{DB}:{DB+1}] offset0:0 offset1:8")
e("s_waitcnt lgkmcnt(0)")
e("s_barrier")
st(6)
stout()
e("s_endpgm")

e("L_down:")
e("s_sub_u32 s24, s3, 7\ns_lshr_b32 s25, s24, 1\ns_and_b32 s24, s24, 1")
e("s_lshl_b32 s26, s21, 6\ns_lshl_b32 s27, s25, 5\ns_add_u32 s26, s26, s27")
e("v_lshl_add_u32 v4, v2, 3, s26")
e("v_mul_u32_u24 v4, 1152, v4")
e("v_lshl_add_u32 v4, v3, 4, v4")
e("s_mul_i32 s27, s22, 384\ns_lshl_b32 s28, s24, 8\ns_add_u32 s27, s27, s28")
e("v_add_u32 v4, s27, v4")
e("v_add_u32 v5, 4608, v4")
e("s_cmp_eq_u32 s24, 1")
e("s_cselect_b32 s28, 0x00ff00ff, -1")
e("v_lshrrev_b32 v6, 1, v3")
e("v_and_b32 v7, 1, v6")
e("v_lshlrev_b32 v7, 4, v7")
e("v_mov_b32 v8, 0xffff\nv_lshlrev_b32 v7, v7, v8")
e("v_lshrrev_b32 v8, 1, v6")
for r in range(4):
    e(f"v_cmp_eq_u32 vcc, {r}, v8\ns_nop 1\nv_cndmask_b32 v{12+r}, 0, v7, vcc")
e("v_lshl_add_u32 v8, v2, 3, v6")
e(f"s_mul_i32 s29, s21, 3072\ns_lshl_b32 s30, s25, 9\ns_add_u32 s29, s29, s30\ns_add_u32 s29, s29, {EXCH}")
e("v_lshl_add_u32 v8, v8, 4, s29")
e("v_and_b32 v9, 12, v3")
e("v_add_u32 v9, v9, v2")
e("s_mul_i32 s29, s22, 24\ns_lshl_b32 s30, s24, 4\ns_add_u32 s29, s29, s30")
e("v_add_u32 v9, s29, v9")
e("v_mul_u32_u24 v9, 9216, v9")
e("v_and_b32 v10, 3, v3")
e("v_lshl_add_u32 v9, v10, 4, v9")
e(f"s_lshl_b32 s29, s21, 1\ns_add_u32 s29, s29, s25\ns_lshl_b32 s29, s29, 6\ns_add_u32 s29, s29, {PART}")
e("v_add_u32 v9, s29, v9")
e("v_and_b32 v10, 1, v3")
e("v_cmp_eq_u32 s[34:35], 1, v10")
e("v_mov_b32 v11, 0xfffffc00")
e("v_mov_b32 v10, 0")
e("s_waitcnt lgkmcnt(0)")
st(1)
L=32
def dnload(i): e(f"global_load_dwordx4 v[{L+4*i}:{L+4*i+3}], v{4+i//4}, s[12:13] offset:{1152*(i%4)} {A.wfl}")
B0()
e("s_mov_b32 s30, 0xffff")
e("s_mov_b32 s31, 0xbfb8aa3b")
if A.early:
    e("L_dwait:")
    e(f"s_sleep 1\nds_read_b32 v16, v10 offset:{LCNT}\ns_waitcnt lgkmcnt(0)\nv_cmp_gt_u32 vcc, {A.dcnt}, v16\ns_cbranch_vccnz L_dwait")
e("s_mov_b32 exec_lo, s28\ns_mov_b32 exec_hi, s28")
for i in range(A.early): dnload(i)
e("s_barrier")
for i in range(A.early,8): dnload(i)
e("s_mov_b64 exec, -1")
e(f"ds_read_b32 v16, v10 offset:{LMSG+8}")
st(2)
e("s_waitcnt lgkmcnt(0)")
e("v_readfirstlane_b32 s36, v16")
tags(36)
e("s_barrier")
e("s_barrier")
e("s_waitcnt vmcnt(0)")
st(3)
B=64
for s in range(8):
    for r in range(4):
        a=(2*r-s)%8; b=(2*r+1-s)%8
        e(f"v_bfi_b32 v{B+4*s+r}, s30, v{L+4*a+r}, v{L+4*b+r}")
e(f"s_mov_b32 s37, {SPIN}")
e("L_dpoll:")
for p in range(3): e(f"global_load_dwordx4 v[{16+4*p}:{19+4*p}], v8, s[18:19] offset:{1024*p} sc1")
e("s_sub_u32 s37, s37, 1")
e("s_waitcnt vmcnt(2)")
e(f"v_xor_b32 v28, s{T}, v16")
for k in range(1,4): e(f"v_bitop3_b32 v28, v{16+k}, s{T+k}, v28 bitop3:0xbe")
for p in (1,2):
    e(f"s_waitcnt vmcnt({2-p})")
    for k in range(4): e(f"v_bitop3_b32 v28, v{16+4*p+k}, s{T+k}, v28 bitop3:0xbe")
e("v_and_b32 v28, 0x3ff, v28")
e("v_cmp_ne_u32 vcc, 0, v28")
e("s_cbranch_scc1 L_dgo")
e("s_cbranch_vccnz L_dpoll")
e("L_dgo:")
st(4)
e("v_pk_add_f32 v[16:17], v[16:17], v[20:21]\nv_pk_add_f32 v[18:19], v[18:19], v[22:23]")
e("v_pk_add_f32 v[16:17], v[16:17], v[24:25]\nv_pk_add_f32 v[18:19], v[18:19], v[26:27]")
e("v_cndmask_b32 v16, v16, v17, s[34:35]\nv_cndmask_b32 v18, v18, v19, s[34:35]")
e("v_cvt_pk_bf16_f32 v16, v16, v18")
e("v_and_b32 v20, 0xffff0000, v16")
e("v_lshlrev_b32 v16, 16, v16")
e("v_mul_f32 v17, s31, v16")
e("v_exp_f32 v17, v17\ns_nop 0\nv_add_f32 v17, 1.0, v17\nv_rcp_f32 v17, v17\ns_nop 0")
e("v_mul_f32 v16, v16, v17")
e("v_cvt_pk_bf16_f32 v16, v16, v16")
e("v_and_b32 v16, 0xffff0000, v16")
e("v_mul_f32 v16, v16, v20")
e("v_cvt_pk_bf16_f32 v16, v16, v16")
e("s_nop 1")
AF=32
for s in range(8):
    for r in range(4):
        if s==0: e(f"v_and_b32 v{AF+r}, v16, v{12+r}")
        else: e(f"v_and_b32_dpp v{AF+4*s+r}, v16, v{12+r} row_ror:{2*s}{DPP}")
    if s>=1:
        c="0" if s==1 else "v[24:27]"
        e(f"v_mfma_f32_16x16x32_bf16 v[24:27], v[{AF+4*(s-1)}:{AF+4*(s-1)+3}], v[{B+4*(s-1)}:{B+4*(s-1)+3}], {c}")
e("s_nop 1")
e(f"v_mfma_f32_16x16x32_bf16 v[24:27], v[{AF+28}:{AF+31}], v[{B+28}:{B+31}], v[24:27]")
e("s_mov_b32 exec_lo, s28\ns_mov_b32 exec_hi, s28")
e("s_nop 5")
for k in range(4): e(f"v_and_or_b32 v{24+k}, v{24+k}, v11, s{T+k}")
e("global_store_dwordx4 v9, v[24:27], s[18:19] sc1")
st(5)
stout()
e("s_endpgm")

e("L_router:")
X=8; W=44
e("v_lshrrev_b32 v1, 3, v0")
e("v_and_b32 v2, 7, v0")
e("v_lshlrev_b32 v2, 4, v2")
e("s_lshl_b32 s24, s2, 3")
e("v_add_u32 v3, s24, v1")
e("v_mul_u32_u24 v4, 1152, v3")
e("v_add_u32 v4, v4, v2")
e("v_mov_b32 v7, 0")
e(f"ds_write_b32 v7, v7 offset:{LCNT}")
e("s_waitcnt lgkmcnt(0)")
st(1)
for i in range(9): e(f"global_load_dwordx4 v[{X+4*i}:{X+4*i+3}], v4, s[4:5] offset:{128*i} {A.xfl}")
e("global_load_dword v6, v7, s[18:19] sc1")
for i in range(9): e(f"global_load_dwordx4 v[{W+4*i}:{W+4*i+3}], v2, s[6:7] offset:{128*i}")
B0()
for k in range(4): e(f"v_mov_b32 v{80+k}, 0")
e("v_sub_u32 v5, 2047, v3")
e("s_mov_b32 s25, 0xffff0000")
e("s_movk_i32 s26, 0x207")
e(f"s_lshl_b32 s27, s23, 5\ns_add_u32 s27, s27, s20\ns_lshl_b32 s27, s27, 4\ns_add_u32 s27, s27, {CA}")
e("v_mov_b32 v101, s27")
e("s_getreg_b32 s31, hwreg(HW_REG_XCC_ID, 0, 4)")
e("s_mov_b32 s96, s4\ns_mov_b32 s97, s5\ns_mov_b32 s98, 2359296\ns_mov_b32 s99, 0x00020000")
e(f"s_and_b32 s30, s2, 63\ns_lshl_b32 s30, s30, 7\ns_add_u32 s30, s30, {LVL2}")
e("s_add_u32 s100, s18, s30\ns_addc_u32 s101, s19, 0")
e(f"s_mov_b32 m0, {LXS}")
e("v_subrev_u32 v102, 24, v0\nv_min_u32 v102, v102, v0\nv_lshlrev_b32 v102, 4, v102")
e("s_mul_i32 s30, s22, 384\nv_add_u32 v102, s30, v102")
e(f"s_lshl_b32 s30, s22, 4\ns_sub_u32 s30, s27, s30\ns_add_u32 s30, s30, {CB-CA}")
e("v_lshl_add_u32 v103, v0, 4, s30")
e("s_waitcnt vmcnt(9)")
e("v_readfirstlane_b32 s90, v6")
e("s_add_u32 s90, s90, 1\ns_mul_i32 s91, s90, 0x9e3779b1\ns_and_b32 s91, s91, 0xfffffff0\ns_or_b32 s31, s31, s91")
e("v_mov_b32 v86, s90\nv_mov_b32 v87, s31")
e(f"ds_write_b32 v7, v86 offset:{LMSG+8}")
for i in range(9):
    e(f"s_waitcnt vmcnt({8-i})")
    for k in range(4): e(f"v_dot2c_f32_bf16 v{80+k}, v{X+4*i+k}, v{W+4*i+k}")
st(2)
e("s_nop 2")
e("v_add_f32 v80, v80, v81\nv_add_f32 v82, v82, v83\ns_nop 0\nv_add_f32 v80, v80, v82")
for ctrl in ("quad_perm:[1,0,3,2]","quad_perm:[2,3,0,1]","row_half_mirror"):
    e("s_nop 1")
    e(f"v_add_f32_dpp v80, v80, v80 {ctrl}{DPP}")
e("v_cvt_pk_bf16_f32 v81, v80, v80")
e("v_cmp_u_f32 vcc, v80, v80")
e("v_ashrrev_i32 v82, 31, v81")
e("v_or_b32 v82, 0x80000000, v82")
e("v_xor_b32 v81, v81, v82")
e("v_cndmask_b32 v81, v81, 0, vcc")
e("v_bfi_b32 v83, s25, v81, v5")
e("s_nop 1")
e(f"v_min_u32_dpp v85, v83, v83 row_ror:8{DPP}")
e(f"v_max_u32_dpp v84, v83, v83 row_ror:8{DPP}")
e("s_nop 0")
merge_dpp(84,85,82,"row_bcast:15",0xa)
merge_dpp(84,85,82,"row_bcast:31",0xc)
e("s_mov_b32 exec_lo, 0\ns_mov_b32 exec_hi, 0x80000000")
e(f"global_store_dwordx4 v101, v[84:87], s[18:19] {A.afl}")
e("v_add_u32 v101, %d, v101"%(CB-CA))
if not A.nob: e("global_store_dwordx4 v101, v[84:87], s[18:19] sc1")
e("s_mov_b64 exec, -1")
e("s_waitcnt lgkmcnt(0)")
e("s_cmp_lt_u32 s2, 216\ns_cbranch_scc1 L_nob1")
e("s_barrier")
e("L_nob1:")
st(3)
e("v_readlane_b32 s28, v85, 63")
e("v_cmp_class_f32 vcc, v80, s26")
e("s_cbranch_vccnz L_fix")
e("L_fixed:")
if A.ostage==0:
    e("v_cmp_gt_u32 vcc, s28, v83")
    e("s_mov_b64 exec, vcc")
    for i in range(9): e(f"global_store_dwordx4 v4, v[{X+4*i}:{X+4*i+3}], s[14:15] offset:{128*i} {A.ofl}")
else:
    e("s_mov_b32 s28, 0")
e(f"s_mov_b32 s29, {SPIN}")
e("s_mov_b32 exec_lo, 0x00ffffff\ns_mov_b32 exec_hi, 0")
e("L_rpoll:")
e("s_load_dwordx16 s[32:47], s[100:101], 0 glc\ns_load_dwordx16 s[48:63], s[100:101], 64 glc")
e("s_sub_u32 s29, s29, 1")
e("s_cbranch_scc1 L_rto")
e("s_waitcnt lgkmcnt(0)")
for g in range(8):
    e(f"s_cmp_eq_u64 s[{34+4*g}:{35+4*g}], s[90:91]\ns_cbranch_scc0 L_rpoll")
e("L_rto:")
e("s_waitcnt lgkmcnt(0)")
st(4)
for g in range(1,8):
    e(f"s_min_u32 s34, s32, s{32+4*g}\ns_max_u32 s32, s32, s{32+4*g}\ns_max_u32 s33, s33, s{33+4*g}\ns_max_u32 s33, s33, s34")
e("s_and_b32 s34, s32, 0x7ff\ns_and_b32 s35, s33, 0x7ff")
e("s_sub_u32 s34, 2047, s34\ns_sub_u32 s35, 2047, s35")
e("s_mul_i32 s34, s34, 1152\ns_mul_i32 s35, s35, 1152")
e("s_cmp_ge_u32 s2, 216\ns_cbranch_scc1 L_rnf")
e("buffer_load_dwordx4 v102, s[96:99], s34 offen lds")
e("s_mov_b32 exec_lo, 0xff000000\ns_mov_b32 exec_hi, 0x0000ffff")
e("buffer_load_dwordx4 v102, s[96:99], s35 offen lds")
e("s_mov_b64 exec, 7")
e("global_load_dwordx2 v[62:63], v103, s[18:19] offset:8 sc1")
e("s_barrier")
e("s_waitcnt vmcnt(1)")
e("s_barrier")
st(5)
e("s_mov_b64 exec, -1")
e("v_cmp_le_u32 vcc, s28, v83")
e("v_cmp_gt_u32 s[36:37], s33, v83")
e("s_and_b64 exec, vcc, s[36:37]")
e("s_cbranch_execz L_nolate")
for i in range(9): e(f"global_store_dwordx4 v4, v[{X+4*i}:{X+4*i+3}], s[14:15] offset:{128*i} {A.ofl}")
e("s_waitcnt vmcnt(9)")
e("s_branch L_late")
e("L_nolate:")
e("s_waitcnt vmcnt(0)")
e("L_late:")
e("s_mov_b64 exec, 7")
e("v_xor_b32 v62, v62, v86\nv_xor_b32 v63, v63, v87\nv_or_b32 v62, v62, v63")
e("v_cmp_ne_u32 vcc, 0, v62")
e("s_mov_b64 exec, -1")
tags(90)
e("s_mul_i32 s24, s23, 9\ns_add_u32 s21, s21, s24")
e(f"v_lshlrev_b32 v1, 4, v0")
e(f"s_mul_i32 s24, s21, 3\ns_add_u32 s24, s24, s22\ns_lshl_b32 s24, s24, 10\ns_add_u32 s24, s24, {EXCH}")
e("v_add_u32 v2, s24, v1")
e("v_mov_b32 v3, 0xfffffc00")
e("s_barrier")
P=44
for w in range(6): e(f"ds_read_b128 v[{P+4*w}:{P+4*w+3}], v1 offset:{LRED+1024*w}")
for w in range(1,6):
    e(f"s_waitcnt lgkmcnt({0 if A.stamps else 5-w})")
    e(f"v_pk_add_f32 v[{P}:{P+1}], v[{P}:{P+1}], v[{P+4*w}:{P+4*w+1}]")
    e(f"v_pk_add_f32 v[{P+2}:{P+3}], v[{P+2}:{P+3}], v[{P+4*w+2}:{P+4*w+3}]")
for k in range(4): e(f"v_and_or_b32 v{P+k}, v{P+k}, v3, s{T+k}")
if A.local:
    e("s_cbranch_vccnz L_far")
    e(f"global_store_dwordx4 v2, v[{P}:{P+3}], s[18:19]")
    st(6)
    stout()
    e("s_endpgm")
    e("L_far:")
e(f"global_store_dwordx4 v2, v[{P}:{P+3}], s[18:19] sc1")
st(6)
stout()
e("s_endpgm")
e("L_rnf:")
e("s_mov_b64 exec, 1")
e("v_mov_b32 v60, s34\nv_mov_b32 v61, s35\nv_mov_b32 v62, s32\nv_mov_b32 v63, s33")
e(f"ds_write_b64 v7, v[60:61] offset:{LMSG}\nds_write_b64 v7, v[62:63] offset:{LMSG+16}")
e("s_cmp_lg_u32 s2, 255\ns_cbranch_scc1 L_nobump")
e("global_store_dword v7, v86, s[18:19] sc1")
e("L_nobump:")
e("s_waitcnt lgkmcnt(0)")
e("s_barrier")
e("s_mov_b64 exec, -1")
e("v_cmp_le_u32 vcc, s28, v83")
e("v_cmp_gt_u32 s[36:37], s33, v83")
e("s_and_b64 exec, vcc, s[36:37]")
e("s_cbranch_execz L_nolate2")
for i in range(9): e(f"global_store_dwordx4 v4, v[{X+4*i}:{X+4*i+3}], s[14:15] offset:{128*i} {A.ofl}")
e("L_nolate2:")
st(6)
stout()
e("s_endpgm")

e("L_red:")
e("s_cmp_eq_u32 s3, 3\ns_cbranch_scc1 L_lead")
e("s_cmp_ge_u32 s3, 3\ns_cbranch_scc1 L_end")
e("s_sub_u32 s24, s2, 216\ns_lshl_b32 s24, s24, 1\ns_add_u32 s24, s24, s3\ns_sub_u32 s24, s24, 1")
e("s_cmp_ge_u32 s24, 72\ns_cbranch_scc1 L_end")
e(f"s_mul_i32 s25, s24, 9216\ns_add_u32 s25, s25, {PART}")
e("v_lshl_add_u32 v1, v0, 4, s25")
e("v_add_u32 v2, 4096, v1\nv_add_u32 v3, 8192, v1")
e("v_bfe_u32 v4, v0, 4, 1")
e("v_and_b32 v5, 3, v0")
e("v_lshl_add_u32 v4, v5, 3, v4")
e("s_lshr_b32 s26, s24, 2\ns_lshl_b32 s26, s26, 5\ns_and_b32 s27, s24, 3\ns_lshl_b32 s27, s27, 1\ns_add_u32 s26, s26, s27")
e("v_add_lshl_u32 v4, v4, s26, 1")
e("v_lshrrev_b32 v5, 5, v0\nv_lshlrev_b32 v5, 2, v5")
e("v_mov_b32 v6, 0")
e("s_waitcnt lgkmcnt(0)")
st(1)
B0()
e("s_barrier")
e("s_barrier")
e(f"ds_read_b32 v8, v5 offset:{LMSG}\nds_read_b32 v7, v5 offset:{LMSG+16}\nds_read_b32 v9, v6 offset:{LMSG+8}")
e("s_waitcnt lgkmcnt(0)")
st(2)
e("v_add_u32 v4, v4, v8")
e("global_load_ushort v10, v4, s[4:5]")
e("v_readfirstlane_b32 s36, v9")
tags(36)
e("v_ashrrev_i32 v8, 31, v7\nv_not_b32 v8, v8\nv_or_b32 v8, 0x80000000, v8\nv_xor_b32 v7, v7, v8\nv_and_b32 v7, 0xffff0000, v7")
e("v_mul_f32 v7, 0xbfb8aa3b, v7")
e("v_exp_f32 v7, v7\ns_nop 0\nv_add_f32 v7, 1.0, v7\nv_rcp_f32 v7, v7\ns_nop 0")
e("v_cvt_pk_bf16_f32 v7, v7, v7\nv_and_b32 v7, 0xffff0000, v7")
e("s_waitcnt vmcnt(0)")
e("v_lshlrev_b32 v10, 16, v10")
e(f"s_mov_b32 s37, {SPIN}")
P=16
e("L_ppoll:")
for i in range(9): e(f"global_load_dwordx4 v[{P+4*i}:{P+4*i+3}], v{1+i//4}, s[18:19] offset:{1024*(i%4)} sc1")
e("s_sub_u32 s37, s37, 1")
e("s_waitcnt vmcnt(8)")
e(f"v_xor_b32 v11, s{T}, v{P}")
for k in range(1,4): e(f"v_bitop3_b32 v11, v{P+k}, s{T+k}, v11 bitop3:0xbe")
for i in range(1,9):
    e(f"s_waitcnt vmcnt({8-i})")
    for k in range(4): e(f"v_bitop3_b32 v11, v{P+4*i+k}, s{T+k}, v11 bitop3:0xbe")
    e(f"v_pk_add_f32 v[{P}:{P+1}], v[{P}:{P+1}], v[{P+4*i}:{P+4*i+1}]")
    e(f"v_pk_add_f32 v[{P+2}:{P+3}], v[{P+2}:{P+3}], v[{P+4*i+2}:{P+4*i+3}]")
e("v_and_b32 v11, 0x3ff, v11")
e("v_cmp_ne_u32 vcc, 0, v11")
e("s_cbranch_scc1 L_pgo")
e("s_cbranch_vccnz L_ppoll")
e("L_pgo:")
st(3)
e(f"v_permlane32_swap_b32 v{P}, v{P+1}")
e(f"v_permlane32_swap_b32 v{P+2}, v{P+3}")
e("s_nop 1")
e(f"v_add_f32 v{P}, v{P}, v{P+1}\nv_add_f32 v{P+2}, v{P+2}, v{P+3}")
e("s_nop 1")
e(f"v_permlane16_swap_b32 v{P}, v{P+2}")
e("s_nop 1")
e(f"v_add_f32 v{P}, v{P}, v{P+2}")
e("s_nop 1")
e(f"v_add_f32_dpp v{P}, v{P}, v{P} row_ror:4{DPP}")
e("s_nop 1")
e(f"v_add_f32_dpp v{P}, v{P}, v{P} row_ror:8{DPP}")
e(f"v_cvt_pk_bf16_f32 v{P}, v{P}, v{P}\nv_and_b32 v{P}, 0xffff0000, v{P}")
e(f"v_mul_f32 v{P}, v{P}, v7")
e(f"v_cvt_pk_bf16_f32 v{P}, v{P}, v{P}\nv_and_b32 v{P}, 0xffff0000, v{P}")
e(f"v_fma_f32 v{P}, v10, 0, v{P}")
e(f"v_add_f32 v{P}, v10, v{P}")
e(f"v_cvt_pk_bf16_f32 v{P}, v{P}, v{P}")
e("s_mov_b32 exec_lo, 0x000f000f\ns_mov_b32 exec_hi, 0x000f000f")
e(f"global_store_short v4, v{P}, s[14:15] {A.ffl}")
st(4)
stout()
if A.pad:
    e("s_cmp_lg_u32 s24, 0\ns_cbranch_scc1 L_end")
    e(f"L_pad:\ns_memrealtime s[40:41]\ns_waitcnt lgkmcnt(0)\ns_sub_u32 s42, s40, s88\ns_cmp_lt_u32 s42, {A.pad}\ns_cbranch_scc1 L_pad")
e("L_end:\ns_endpgm")
e("L_lead:")
e("s_cmp_lt_u32 s2, 240\ns_cbranch_scc1 L_end")
e("s_cmp_ge_u32 s2, 248\ns_cselect_b32 s24, 1, 2\ns_lshl_b32 s24, s24, 12")
e("s_lshl_b32 s25, s23, 9\ns_add_u32 s24, s24, s25")
e("v_and_b32 v1, 31, v0")
e("v_lshl_add_u32 v1, v1, 4, s24")
e(f"s_lshl_b32 s25, s23, 4\ns_add_u32 s25, s25, {LVL2}")
e("v_lshl_add_u32 v2, v0, 7, s25")
e("v_mov_b32 v6, 0")
e("s_waitcnt lgkmcnt(0)")
st(1)
B0()
e("s_barrier")
e(f"ds_read_b32 v9, v6 offset:{LMSG+8}")
e("s_waitcnt lgkmcnt(0)")
e("v_readfirstlane_b32 s36, v9")
e("s_mul_i32 s37, s36, 0x9e3779b1\ns_and_b32 s37, s37, 0xfffffff0")
e(f"s_mov_b32 s29, {SPIN}")
e("L_lpoll:")
e("global_load_dwordx4 v[8:11], v1, s[18:19] sc1")
e("s_sub_u32 s29, s29, 1")
e("s_waitcnt vmcnt(0)")
e("v_xor_b32 v12, s37, v11\nv_and_b32 v12, 0xfffffff0, v12")
e("v_bitop3_b32 v12, v10, s36, v12 bitop3:0xbe")
e("v_cmp_ne_u32 vcc, 0, v12")
e("s_cbranch_scc1 L_end")
e("s_cbranch_vccnz L_lpoll")
st(2)
for ctrl in ("row_ror:8","row_ror:4","row_ror:2","row_ror:1"): merge_dpp(8,9,12,ctrl)
e("v_mov_b32 v12, v8\nv_mov_b32 v13, v9\nv_mov_b32 v11, s37")
e("s_nop 0")
e("v_permlane16_swap_b32 v8, v12\nv_permlane16_swap_b32 v9, v13")
e("s_nop 1")
e("v_min_u32 v14, v8, v12\nv_max_u32 v8, v8, v12\nv_max3_u32 v9, v9, v13, v14")
e("global_store_dwordx4 v2, v[8:11], s[18:19] sc1")
st(3)
stout()
e("s_endpgm")
X=8
e("L_fix:")
e("s_mov_b32 s30, 0x7f807f80\ns_mov_b32 s36, 0x00400040")
for k in range(36):
    e(f"v_and_b32 v88, s30, v{X+k}\nv_add_u32 v88, 0x00800080, v88\nv_lshrrev_b32 v88, 9, v88\nv_and_or_b32 v{X+k}, v88, s36, v{X+k}")
e("s_branch L_fixed")
e(f""".section .rodata,"a"
.p2align 6
.amdhsa_kernel {K}
  .amdhsa_next_free_vgpr 104
  .amdhsa_next_free_sgpr 102
  .amdhsa_accum_offset 104
  .amdhsa_group_segment_fixed_size 0
  .amdhsa_kernarg_size 64
  .amdhsa_user_sgpr_count 2
  .amdhsa_user_sgpr_kernarg_segment_ptr 1
  .amdhsa_system_sgpr_workgroup_id_x 1
  .amdhsa_float_denorm_mode_32 3
.end_amdhsa_kernel""")
s="\n".join(o)
if A.stamps:
    import stampify
    s=stampify.conv(s).replace("s_lshl_b32 s80, s86, 3","s_lshl_b32 s80, s86, 4")
print(s)
```

```python
import sys, argparse
ap=argparse.ArgumentParser()
ap.add_argument("--stamps",action="store_true")
ap.add_argument("--early",type=int,default=6)
ap.add_argument("--dpair",type=int,default=3)
ap.add_argument("--b0w",type=int,default=0)
ap.add_argument("--pre",type=int,default=-1)
ap.add_argument("--boost",type=int,default=0)
ap.add_argument("--thr",type=int,default=3)
ap.add_argument("--xfl",default="nt")
ap.add_argument("--wfl",default="nt")
ap.add_argument("--ofl",default="sc1")
ap.add_argument("--ffl",default="sc1")
ap.add_argument("--local",type=int,default=1)
ap.add_argument("--warm",type=int,default=1)
ap.add_argument("--clean",type=int,default=1)
ap.add_argument("--xclean",type=int,default=1)
ap.add_argument("--ostage",type=int,default=2)
ap.add_argument("--pad",type=int,default=0)
A=ap.parse_args()
NAME="standalone__moe_arch_mod__prompt"
HDR=open('cdna_kernels/%s.s.ref'%NAME).read().split('; Override launch')[0]
CA=4096; CB=8192; LVL2=16384; EXCH=0x8000; PART=0x40000
LMSG=0; LXS=64; LRED=1024; LY=1024+6*1152
LDS=LY+6*512
SPIN=1<<15
o=[]
def e(s): o.append(s)
def st(k):
    if A.stamps: e(f";STAMP {k}")
def stout():
    if A.stamps: e(";STAMPOUT 0")
DPP=" row_mask:0xf bank_mask:0xf"
def merge_dpp(a1,a2,m,ctrl,rowmask=0xf):
    d=f" {ctrl} row_mask:{rowmask:#x} bank_mask:0xf"
    e("s_nop 0")
    e(f"v_min_u32_dpp v{m}, v{a1}, v{a1}{d}")
    e(f"v_max_u32_dpp v{a2}, v{a2}, v{a2}{d}")
    e(f"v_max_u32_dpp v{a1}, v{a1}, v{a1}{d}")
    e(f"v_max_u32 v{a2}, v{a2}, v{m}")
T=92; C=44
def tags(sTA):
    e(f"s_and_b32 s{T}, s{sTA}, 0x3ff")
    e(f"s_lshr_b32 s{T+1}, s{sTA}, 10\ns_add_u32 s{T+1}, s{T+1}, s{sTA}\ns_and_b32 s{T+1}, s{T+1}, 0x3ff")
    e(f"s_lshr_b32 s{T+2}, s{sTA}, 20\ns_add_u32 s{T+2}, s{T+2}, s{sTA}\ns_and_b32 s{T+2}, s{T+2}, 0x3ff")
    e(f"s_mul_i32 s{T+3}, s{sTA}, 0x9e3779b1\ns_lshr_b32 s{T+3}, s{T+3}, 22")
def lgk(n): return f"s_waitcnt lgkmcnt({0 if A.stamps else n})"
def ldsreduce(P,vaddr,base,stride,vm):
    for w in range(6): e(f"ds_read_b128 v[{P+4*w}:{P+4*w+3}], v{vaddr} offset:{base+stride*w}")
    for w in range(1,6):
        e(lgk(5-w))
        e(f"v_pk_add_f32 v[{P}:{P+1}], v[{P}:{P+1}], v[{P+4*w}:{P+4*w+1}]")
        e(f"v_pk_add_f32 v[{P+2}:{P+3}], v[{P+2}:{P+3}], v[{P+4*w+2}:{P+4*w+3}]")
    for k in range(4): e(f"v_add_u32 v{P+k}, s{C+k}, v{P+k}")
    for k in range(4): e(f"v_and_or_b32 v{P+k}, v{P+k}, v{vm}, s{T+k}")

e(HDR.rstrip())
e(f"; @launch grid=(256,1,1) block=(448,1,1) lds={LDS}")
e('.amdgcn_target "amdgcn-amd-amdhsa--gfx950"\n.text')
K=NAME+"_kernel"
e(f".globl {K}\n.p2align 8\n.type {K},@function\n{K}:")
if A.stamps: e(";STAMPINIT")
if A.pad: e("s_memrealtime s[88:89]")
e("s_load_dwordx16 s[4:19], s[0:1], 0")
e("v_lshrrev_b32 v1, 6, v0")
e("s_cmp_ge_u32 s2, 256\ns_cbranch_scc1 L_end")
e("v_readfirstlane_b32 s3, v1")
e("v_and_b32 v0, 63, v0")
e("s_lshr_b32 s20, s2, 3\ns_mul_i32 s21, s20, 43\ns_lshr_b32 s21, s21, 7")
e("s_mul_i32 s22, s21, 3\ns_sub_u32 s22, s20, s22")
e("s_and_b32 s23, s2, 7")
e("s_mul_i32 s24, s23, 9\ns_add_u32 s21, s21, s24")
e("s_cmp_eq_u32 s3, 0\ns_cbranch_scc1 L_router")
e("s_cmp_ge_u32 s2, 216\ns_cbranch_scc1 L_red")

e("v_lshrrev_b32 v2, 4, v0")
e("v_and_b32 v3, 15, v0")
e("s_mul_i32 s24, s22, 192\ns_lshl_b32 s25, s3, 5\ns_add_u32 s24, s24, s25\ns_sub_u32 s24, s24, 32")
e("v_lshl_add_u32 v4, v2, 3, s24")
e("s_movk_i32 s26, 9216")
e("v_mul_lo_u32 v6, v4, s26")
e("v_and_b32 v5, 7, v3")
e("v_lshl_add_u32 v6, v5, 4, v6")
e("s_lshl_b32 s27, s21, 7")
e("v_add_u32 v6, s27, v6")
e("v_mov_b32 v7, 0")
e("v_cmp_gt_u32 vcc, 8, v3")
e("s_mov_b32 s28, 9216\ns_mov_b32 s29, 0")
e("s_mul_i32 s32, s20, 57\ns_lshr_b32 s32, s32, 9")
e("s_mul_i32 s33, s32, 9\ns_sub_u32 s33, s20, s33")
e("s_mul_i32 s34, s23, 576\ns_mul_i32 s35, s32, 192\ns_add_u32 s34, s34, s35\ns_add_u32 s34, s34, s25\ns_sub_u32 s34, s34, 32")
e("v_lshrrev_b32 v113, 1, v3")
e("v_lshl_add_u32 v10, v2, 3, v113")
e(f"s_lshr_b32 s35, s34, 6\ns_mul_i32 s35, s35, 3072\ns_and_b32 s36, s34, 63\ns_lshl_b32 s36, s36, 4\ns_add_u32 s35, s35, s36\ns_add_u32 s35, s35, {EXCH}")
e("v_lshl_add_u32 v10, v10, 4, s35")
e("s_waitcnt lgkmcnt(0)")
st(1)
e("v_mov_b32 v8, s10\nv_mov_b32 v9, s11\nv_mov_b32 v4, s8\nv_mov_b32 v5, s9")
e("v_cndmask_b32 v8, v8, v4, vcc\nv_cndmask_b32 v9, v9, v5, vcc")
e("v_lshl_add_u64 v[8:9], v[6:7], 0, v[8:9]")
XA=16; F=32; L=64; DL=96-16
XA=16; F=32; L=64; DL=128-48
DL=96;
o[:]=[x.replace("v113","v129") for x in o]
def guload(i):
    e(f"global_load_dwordx4 v[{L+4*i}:{L+4*i+3}], v[8:9], off {A.wfl}")
    if i<7: e("v_lshl_add_u64 v[8:9], s[28:29], 0, v[8:9]")
e("s_barrier")
nw=0
if A.warm:
    for p in range(3): e(f"global_load_dword v128, v10, s[18:19] offset:{1024*p} sc1")
for i in range(A.pre if A.pre>=0 else min(A.thr,8)): guload(i)
for k in range(16): e(f"v_mov_b32 v{XA+k}, 0")
e("v_and_b32 v5, 7, v3")
e("v_mul_u32_u24 v4, 144, v5")
e("v_lshl_add_u32 v4, v2, 4, v4")
e("v_and_b32 v6, 8, v3")
e("v_add_u32 v4, v4, v6")
e(f"s_mul_i32 s25, s3, 1152\ns_add_u32 s25, s25, {LRED-1152}")
e("v_add_u32 v11, s25, v4")
e("v_and_b32 v12, 1, v3")
e("v_cmp_eq_u32 s[38:39], 1, v12")
e("v_mul_u32_u24 v12, 384, v12")
e("v_lshl_add_u32 v12, v2, 4, v12")
e(f"s_lshl_b32 s25, s3, 6\ns_add_u32 s25, s25, {LXS-64}")
e("v_add_u32 v12, s25, v12")
e("v_lshl_add_u32 v14, v2, 3, s34")
e("v_mul_u32_u24 v14, 1152, v14")
e("v_lshl_add_u32 v14, v5, 4, v14")
e("s_lshl_b32 s35, s33, 7")
e("v_add_u32 v14, s35, v14")
e("v_add_u32 v15, 4608, v14")
e("v_lshl_add_u32 v13, v3, 2, v2")
e(f"s_lshl_b32 s25, s3, 9\ns_add_u32 s25, s25, {LY-512}")
e("v_lshl_add_u32 v13, v13, 4, s25")
e("v_and_b32 v130, 1, v129")
e("v_lshlrev_b32 v130, 4, v130")
e("v_mov_b32 v131, 0xffff\nv_lshlrev_b32 v130, v130, v131")
e("v_lshrrev_b32 v131, 1, v129")
for r in range(4):
    e(f"v_cmp_eq_u32 vcc, {r}, v131\ns_nop 1\nv_cndmask_b32 v{4+r}, 0, v130, vcc")
e("s_mov_b32 s30, 0x05040100\ns_mov_b32 s31, 0x07060302")
e("s_mov_b32 s40, 0x00ff00ff\ns_mov_b32 s41, 0x00ff00ff")
e("s_mov_b32 s42, 0xffff\ns_mov_b32 s43, 0xbfb8aa3b")
e("v_mov_b32 v129, 0")
def perms(r):
    for j in range(4):
        a=L+8*r+j; b=L+8*r+4+j
        e(f"v_perm_b32 v{F+8*j+r}, v{b}, v{a}, s30")
        e(f"v_perm_b32 v{F+8*j+4+r}, v{b}, v{a}, s31")
def dnload(i): e(f"global_load_dwordx4 v[{DL+4*i}:{DL+4*i+3}], v{14+i//4}, s[12:13] offset:{1152*(i%4)} {A.wfl}")
if A.pre>=0:
    e("s_barrier")
    for i in range(A.pre,A.thr+A.boost): guload(i)
done=0
for i in range(A.thr+(A.boost if A.pre>=0 else 0),8):
    e(f"s_waitcnt vmcnt({A.thr-1})")
    guload(i)
    arrived=i+1-A.thr
    while done<4 and 2*done+2<=arrived: perms(done); done+=1
d=0; gdone=8-A.thr
while d<A.early:
    if gdone<8:
        gdone+=1
        e(f"s_waitcnt vmcnt({8-gdone+d})")
    n=min(A.dpair,A.early-d) if gdone<8 else A.early-d
    e("s_mov_b64 exec, s[40:41]")
    for k in range(n): dnload(d+k)
    e("s_mov_b64 exec, -1")
    d+=n
    while done<4 and 2*done+2<=gdone: perms(done); done+=1
st(2)
e("s_barrier")
e("s_mov_b64 exec, s[40:41]")
for i in range(A.early,8): dnload(i)
e("s_mov_b64 exec, -1")
e(f"ds_read_b32 v128, v129 offset:{LMSG+8}")
for r in range(done,4):
    e(f"s_waitcnt vmcnt({6-2*r+8})")
    perms(r)
e("s_waitcnt lgkmcnt(0)")
e("v_readfirstlane_b32 s36, v128")
tags(36)
st(3)
e("s_barrier")
for jj in range(4):
    m=0x00030003<<(4*jj)
    e(f"s_mov_b32 exec_lo, {m:#x}\ns_mov_b32 exec_hi, {m:#x}")
    e(f"ds_read_b128 v[{XA+4*jj}:{XA+4*jj+3}], v12")
e("s_mov_b64 exec, -1")
DA=64; DB=68
for jj in range(4):
    e(lgk(3-jj))
    for D,j in ((DA,jj),(DB,jj+4)):
        c="0" if jj==0 else f"v[{D}:{D+3}]"
        e(f"v_mfma_f32_16x16x32_bf16 v[{D}:{D+3}], v[{XA+4*jj}:{XA+4*jj+3}], v[{F+4*j}:{F+4*j+3}], {c}")
e("s_nop 7")
e(f"ds_write2_b64 v11, v[{DA}:{DA+1}], v[{DB}:{DB+1}] offset0:0 offset1:8")
e("s_waitcnt lgkmcnt(0)")
e("s_barrier")
e("s_waitcnt vmcnt(0)")
st(4)
B=F
for s in range(8):
    for r in range(4):
        a=(2*r-s)%8; b=(2*r+1-s)%8
        e(f"v_bfi_b32 v{B+4*s+r}, s42, v{DL+4*a+r}, v{DL+4*b+r}")
e(f"s_mov_b32 s37, {SPIN}")
e("L_dpoll:")
for p in range(3): e(f"global_load_dwordx4 v[{16+4*p}:{19+4*p}], v10, s[18:19] offset:{1024*p} sc1")
e("s_sub_u32 s37, s37, 1")
e("s_waitcnt vmcnt(2)")
e(f"v_xor_b32 v28, s{T}, v16")
for k in range(1,4): e(f"v_bitop3_b32 v28, v{16+k}, s{T+k}, v28 bitop3:0xbe")
for p in (1,2):
    e(f"s_waitcnt vmcnt({2-p})")
    for k in range(4): e(f"v_bitop3_b32 v28, v{16+4*p+k}, s{T+k}, v28 bitop3:0xbe")
e("v_and_b32 v28, 0x3ff, v28")
e("v_cmp_ne_u32 vcc, 0, v28")
e("s_cbranch_scc1 L_dgo")
e("s_cbranch_vccnz L_dpoll")
e("L_dgo:")
st(5)
e("v_pk_add_f32 v[16:17], v[16:17], v[20:21]\nv_pk_add_f32 v[18:19], v[18:19], v[22:23]")
e("v_pk_add_f32 v[16:17], v[16:17], v[24:25]\nv_pk_add_f32 v[18:19], v[18:19], v[26:27]")
e("v_cndmask_b32 v16, v16, v17, s[38:39]\nv_cndmask_b32 v18, v18, v19, s[38:39]")
e("v_cvt_pk_bf16_f32 v16, v16, v18")
e("v_and_b32 v20, 0xffff0000, v16")
e("v_lshlrev_b32 v16, 16, v16")
e("v_mul_f32 v17, s43, v16")
e("v_exp_f32 v17, v17\ns_nop 0\nv_add_f32 v17, 1.0, v17\nv_rcp_f32 v17, v17\ns_nop 0")
e("v_mul_f32 v16, v16, v17")
e("v_cvt_pk_bf16_f32 v16, v16, v16")
e("v_and_b32 v16, 0xffff0000, v16")
e("v_mul_f32 v16, v16, v20")
e("v_cvt_pk_bf16_f32 v16, v16, v16")
e("s_nop 1")
AF=L
for s in range(8):
    for r in range(4):
        if s==0: e(f"v_and_b32 v{AF+r}, v16, v{4+r}")
        else: e(f"v_and_b32_dpp v{AF+4*s+r}, v16, v{4+r} row_ror:{2*s}{DPP}")
    if s>=1:
        c="0" if s==1 else "v[24:27]"
        e(f"v_mfma_f32_16x16x32_bf16 v[24:27], v[{AF+4*(s-1)}:{AF+4*(s-1)+3}], v[{B+4*(s-1)}:{B+4*(s-1)+3}], {c}")
e("s_nop 1")
e(f"v_mfma_f32_16x16x32_bf16 v[24:27], v[{AF+28}:{AF+31}], v[{B+28}:{B+31}], v[24:27]")
e("s_mov_b64 exec, s[40:41]")
e("s_nop 6")
e("ds_write_b128 v13, v[24:27]")
e("s_waitcnt lgkmcnt(0)")
e("s_barrier")
st(6)
stout()
e("s_endpgm")

e("L_router:")
X=8; W=44
e("v_lshrrev_b32 v1, 3, v0")
e("v_and_b32 v2, 7, v0")
e("v_lshlrev_b32 v2, 4, v2")
e("s_lshl_b32 s24, s2, 3")
e("v_add_u32 v3, s24, v1")
e("v_mul_u32_u24 v4, 1152, v3")
e("v_add_u32 v4, v4, v2")
e("v_mov_b32 v7, 0")
e("s_waitcnt lgkmcnt(0)")
st(1)
for i in range(9): e(f"global_load_dwordx4 v[{X+4*i}:{X+4*i+3}], v4, s[4:5] offset:{128*i} {A.xfl}")
e("global_load_dword v6, v7, s[18:19] sc1")
for i in range(9): e(f"global_load_dwordx4 v[{W+4*i}:{W+4*i+3}], v2, s[6:7] offset:{128*i}")
if A.b0w==0: e("s_barrier")
for k in range(4): e(f"v_mov_b32 v{80+k}, 0")
e("v_sub_u32 v5, 2047, v3")
e("s_mov_b32 s25, 0xffff0000")
e("s_movk_i32 s26, 0x207")
e(f"s_lshl_b32 s27, s23, 5\ns_add_u32 s27, s27, s20\ns_lshl_b32 s27, s27, 4\ns_add_u32 s27, s27, {CA}")
e("v_mov_b32 v101, s27")
e("s_getreg_b32 s31, hwreg(HW_REG_XCC_ID, 0, 4)")
e("s_mov_b32 s96, s4\ns_mov_b32 s97, s5\ns_mov_b32 s98, 2359296\ns_mov_b32 s99, 0x00020000")
e(f"s_and_b32 s30, s2, 63\ns_lshl_b32 s30, s30, 7\ns_add_u32 s30, s30, {LVL2}")
e("s_add_u32 s100, s18, s30\ns_addc_u32 s101, s19, 0")
e(f"s_mov_b32 m0, {LXS}")
e("v_subrev_u32 v102, 24, v0\nv_min_u32 v102, v102, v0\nv_lshlrev_b32 v102, 4, v102")
e("s_mul_i32 s30, s22, 384\nv_add_u32 v102, s30, v102")
e("s_mul_i32 s32, s20, 57\ns_lshr_b32 s32, s32, 9\ns_mul_i32 s33, s32, 9\ns_sub_u32 s33, s20, s33")
e(f"s_lshl_b32 s30, s33, 4\ns_sub_u32 s30, s27, s30\ns_add_u32 s30, s30, {CB-CA}")
e("v_lshl_add_u32 v103, v0, 4, s30")
e(f"s_mul_i32 s30, s33, 96\ns_mul_i32 s34, s23, 3\ns_add_u32 s30, s30, s34\ns_add_u32 s30, s30, s32\ns_lshl_b32 s30, s30, 7\ns_add_u32 s30, s30, {PART}")
e("v_mul_u32_u24 v104, 3072, v1")
e("v_add3_u32 v104, v104, v2, s30")
e(f"s_mul_i32 s24, s21, 3\ns_add_u32 s24, s24, s22\ns_lshl_b32 s24, s24, 10\ns_add_u32 s24, s24, {EXCH}")
e("v_lshlrev_b32 v105, 4, v0")
e("v_add_u32 v106, s24, v105")
e("v_mov_b32 v107, 0xfffffc00")
e("v_mul_u32_u24 v108, 144, v1\nv_add_u32 v108, v108, v2")
if A.b0w: e(f"s_waitcnt vmcnt({19-A.b0w})\ns_barrier")
e("s_waitcnt vmcnt(9)")
e("v_readfirstlane_b32 s90, v6")
e("s_add_u32 s90, s90, 1\ns_mul_i32 s91, s90, 0x9e3779b1\ns_and_b32 s91, s91, 0xfffffff0\ns_or_b32 s31, s31, s91")
e("v_mov_b32 v86, s90\nv_mov_b32 v87, s31")
e(f"ds_write_b32 v7, v86 offset:{LMSG+8}")
for i in range(9):
    e(f"s_waitcnt vmcnt({8-i})")
    for k in range(4): e(f"v_dot2c_f32_bf16 v{80+k}, v{X+4*i+k}, v{W+4*i+k}")
st(2)
e("s_nop 2")
e("v_add_f32 v80, v80, v81\nv_add_f32 v82, v82, v83\ns_nop 0\nv_add_f32 v80, v80, v82")
for ctrl in ("quad_perm:[1,0,3,2]","quad_perm:[2,3,0,1]","row_half_mirror"):
    e("s_nop 1")
    e(f"v_add_f32_dpp v80, v80, v80 {ctrl}{DPP}")
e("v_cvt_pk_bf16_f32 v81, v80, v80")
e("v_cmp_u_f32 vcc, v80, v80")
e("v_ashrrev_i32 v82, 31, v81")
e("v_or_b32 v82, 0x80000000, v82")
e("v_xor_b32 v81, v81, v82")
e("v_cndmask_b32 v81, v81, 0, vcc")
e("v_bfi_b32 v83, s25, v81, v5")
e("s_nop 1")
e(f"v_min_u32_dpp v85, v83, v83 row_ror:8{DPP}")
e(f"v_max_u32_dpp v84, v83, v83 row_ror:8{DPP}")
e("s_nop 0")
merge_dpp(84,85,82,"row_bcast:15",0xa)
merge_dpp(84,85,82,"row_bcast:31",0xc)
e("s_mov_b32 exec_lo, 0\ns_mov_b32 exec_hi, 0x80000000")
e("global_store_dwordx4 v101, v[84:87], s[18:19]")
e("v_add_u32 v100, %d, v101"%(CB-CA))
e("global_store_dwordx4 v100, v[84:87], s[18:19] sc1")
e("s_mov_b64 exec, -1")
e("s_waitcnt lgkmcnt(0)")
if A.pre<0: e("s_cmp_lt_u32 s2, 216\ns_cbranch_scc1 L_nob1")
e("s_barrier")
e("L_nob1:")
st(3)
e("v_readlane_b32 s28, v85, 63")
e("v_cmp_class_f32 vcc, v80, s26")
e("s_cbranch_vccnz L_fix")
e("L_fixed:")
def ostores():
    for i in range(9): e(f"global_store_dwordx4 v4, v[{X+4*i}:{X+4*i+3}], s[14:15] offset:{128*i} {A.ofl}")
if A.ostage==0:
    e("v_cmp_gt_u32 vcc, s28, v83")
    e("s_mov_b64 exec, vcc")
    ostores()
else:
    e("s_mov_b32 s28, 0")
tags(90)
e(f"s_mov_b32 s29, {SPIN}")
e("s_mov_b32 exec_lo, 0x00ffffff\ns_mov_b32 exec_hi, 0")
e("L_rpoll:")
e("s_load_dwordx16 s[32:47], s[100:101], 0 glc\ns_load_dwordx16 s[48:63], s[100:101], 64 glc")
e("s_sub_u32 s29, s29, 1")
e("s_cbranch_scc1 L_rto")
e("s_waitcnt lgkmcnt(0)")
for g in range(8):
    e(f"s_cmp_eq_u64 s[{34+4*g}:{35+4*g}], s[90:91]\ns_cbranch_scc0 L_rpoll")
e("L_rto:")
e("s_waitcnt lgkmcnt(0)")
st(4)
for g in range(1,8):
    e(f"s_min_u32 s34, s32, s{32+4*g}\ns_max_u32 s32, s32, s{32+4*g}\ns_max_u32 s33, s33, s{33+4*g}\ns_max_u32 s33, s33, s34")
e("s_and_b32 s34, s32, 0x7ff\ns_and_b32 s35, s33, 0x7ff")
e("s_sub_u32 s34, 2047, s34\ns_sub_u32 s35, 2047, s35")
e("s_mul_i32 s34, s34, 1152\ns_mul_i32 s35, s35, 1152")
e("s_cmp_ge_u32 s2, 216\ns_cbranch_scc1 L_rnf")
e("buffer_load_dwordx4 v102, s[96:99], s34 offen lds")
e("s_mov_b32 exec_lo, 0xff000000\ns_mov_b32 exec_hi, 0x0000ffff")
e("buffer_load_dwordx4 v102, s[96:99], s35 offen lds")
e("s_mov_b64 exec, 0x1ff")
e("global_load_dwordx2 v[62:63], v103, s[18:19] offset:8 sc1")
e("s_barrier")
def late(lbl):
    e("s_mov_b64 exec, -1")
    e("v_cmp_le_u32 vcc, s28, v83")
    e("v_cmp_gt_u32 s[36:37], s33, v83")
    e("s_and_b64 exec, vcc, s[36:37]")
    e(f"s_cbranch_execz {lbl}")
    ostores()
late("L_nolate")
e("s_waitcnt vmcnt(10)")
e("s_barrier")
e("s_waitcnt vmcnt(9)")
e("s_branch L_late")
e("L_nolate:")
e("s_waitcnt vmcnt(1)")
e("s_barrier")
e("s_waitcnt vmcnt(0)")
e("L_late:")
st(5)
for k in range(4): e(f"s_sub_u32 s{C+k}, 512, s{T+k}")
e("s_mov_b64 exec, 0x1ff")
e("v_xor_b32 v62, v62, v86\nv_xor_b32 v63, v63, v87\nv_or_b32 v62, v62, v63")
e("v_cmp_ne_u32 vcc, 0, v62")
if A.clean:
    e("s_mov_b32 exec_lo, 0\ns_mov_b32 exec_hi, 0x80000000")
    e("global_store_dwordx4 v101, v[84:87], s[18:19] sc1")
e("s_mov_b64 exec, -1")
e("s_barrier")
P=44
ldsreduce(P,108,LRED,1152,107)
if A.local:
    e("s_cbranch_vccnz L_far")
    e(f"global_store_dwordx4 v106, v[{P}:{P+3}], s[18:19]")
    e("s_branch L_pub")
    e("L_far:")
e(f"global_store_dwordx4 v106, v[{P}:{P+3}], s[18:19] sc1")
e("L_pub:")
st(6)
e("s_mov_b32 exec_hi, 0")
e("s_barrier")
Q=8
ldsreduce(Q,105,LY,512,107)
e(f"global_store_dwordx4 v104, v[{Q}:{Q+3}], s[18:19] sc1")
st(7)
if A.xclean and A.local:
    e("s_mov_b64 exec, -1")
    e(f"global_store_dwordx4 v106, v[{P}:{P+3}], s[18:19] sc1")
stout()
e("s_endpgm")
e("L_rnf:")
e("s_mov_b64 exec, 1")
e("v_mov_b32 v60, s34\nv_mov_b32 v61, s35\nv_mov_b32 v62, s32\nv_mov_b32 v63, s33")
e(f"ds_write_b64 v7, v[60:61] offset:{LMSG}\nds_write_b64 v7, v[62:63] offset:{LMSG+16}")
e("s_cmp_lg_u32 s2, 255\ns_cbranch_scc1 L_nobump")
e("global_store_dword v7, v86, s[18:19] sc1")
e("L_nobump:")
e("s_waitcnt lgkmcnt(0)")
e("s_barrier")
late("L_nolate2")
e("L_nolate2:")
if A.clean:
    e("s_mov_b32 exec_lo, 0\ns_mov_b32 exec_hi, 0x80000000")
    e("global_store_dwordx4 v101, v[84:87], s[18:19] sc1")
st(6)
stout()
e("s_endpgm")

e("L_red:")
e("s_cmp_eq_u32 s3, 3\ns_cbranch_scc1 L_lead")
e("s_cmp_ge_u32 s3, 2\ns_cbranch_scc1 L_end")
e("s_sub_u32 s24, s2, 216")
e("s_cmp_ge_u32 s24, 36\ns_cbranch_scc1 L_end")
e(f"s_mul_i32 s25, s24, 3072\ns_add_u32 s25, s25, {PART}")
e("v_lshl_add_u32 v1, v0, 4, s25")
e("v_bfe_u32 v4, v0, 4, 1")
e("v_and_b32 v5, 7, v0")
e("v_lshl_add_u32 v4, v5, 1, v4")
e("s_lshl_b32 s26, s24, 4")
e("v_add_lshl_u32 v4, v4, s26, 1")
e("v_lshrrev_b32 v5, 5, v0\nv_lshlrev_b32 v5, 2, v5")
e("v_mov_b32 v6, 0")
e("s_waitcnt lgkmcnt(0)")
st(1)
e("s_barrier")
e("s_barrier")
e("s_barrier")
e(f"ds_read_b32 v8, v5 offset:{LMSG}\nds_read_b32 v7, v5 offset:{LMSG+16}\nds_read_b32 v9, v6 offset:{LMSG+8}")
e("s_waitcnt lgkmcnt(0)")
st(2)
e("v_add_u32 v4, v4, v8")
e("global_load_ushort v10, v4, s[4:5]")
e("v_readfirstlane_b32 s36, v9")
tags(36)
e("v_ashrrev_i32 v8, 31, v7\nv_not_b32 v8, v8\nv_or_b32 v8, 0x80000000, v8\nv_xor_b32 v7, v7, v8\nv_and_b32 v7, 0xffff0000, v7")
e("v_mul_f32 v7, 0xbfb8aa3b, v7")
e("v_exp_f32 v7, v7\ns_nop 0\nv_add_f32 v7, 1.0, v7\nv_rcp_f32 v7, v7\ns_nop 0")
e("v_cvt_pk_bf16_f32 v7, v7, v7\nv_and_b32 v7, 0xffff0000, v7")
e("s_waitcnt vmcnt(0)")
e("v_lshlrev_b32 v10, 16, v10")
e(f"s_mov_b32 s37, {SPIN}")
P=16
e("L_ppoll:")
for i in range(3): e(f"global_load_dwordx4 v[{P+4*i}:{P+4*i+3}], v1, s[18:19] offset:{1024*i} sc1")
e("s_sub_u32 s37, s37, 1")
e("s_waitcnt vmcnt(2)")
e(f"v_xor_b32 v11, s{T}, v{P}")
for k in range(1,4): e(f"v_bitop3_b32 v11, v{P+k}, s{T+k}, v11 bitop3:0xbe")
for i in range(1,3):
    e(f"s_waitcnt vmcnt({2-i})")
    for k in range(4): e(f"v_bitop3_b32 v11, v{P+4*i+k}, s{T+k}, v11 bitop3:0xbe")
    e(f"v_pk_add_f32 v[{P}:{P+1}], v[{P}:{P+1}], v[{P+4*i}:{P+4*i+1}]")
    e(f"v_pk_add_f32 v[{P+2}:{P+3}], v[{P+2}:{P+3}], v[{P+4*i+2}:{P+4*i+3}]")
e("v_and_b32 v11, 0x3ff, v11")
e("v_cmp_ne_u32 vcc, 0, v11")
e("s_cbranch_scc1 L_pgo")
e("s_cbranch_vccnz L_ppoll")
e("L_pgo:")
st(3)
e(f"v_permlane32_swap_b32 v{P}, v{P+1}")
e(f"v_permlane32_swap_b32 v{P+2}, v{P+3}")
e("s_nop 1")
e(f"v_add_f32 v{P}, v{P}, v{P+1}\nv_add_f32 v{P+2}, v{P+2}, v{P+3}")
e("s_nop 1")
e(f"v_permlane16_swap_b32 v{P}, v{P+2}")
e("s_nop 1")
e(f"v_add_f32 v{P}, v{P}, v{P+2}")
e("s_nop 1")
e(f"v_add_f32_dpp v{P}, v{P}, v{P} row_ror:8{DPP}")
e(f"v_cvt_pk_bf16_f32 v{P}, v{P}, v{P}\nv_and_b32 v{P}, 0xffff0000, v{P}")
e(f"v_mul_f32 v{P}, v{P}, v7")
e(f"v_cvt_pk_bf16_f32 v{P}, v{P}, v{P}\nv_and_b32 v{P}, 0xffff0000, v{P}")
e(f"v_fma_f32 v{P}, v10, 0, v{P}")
e(f"v_add_f32 v{P}, v10, v{P}")
e(f"v_cvt_pk_bf16_f32 v{P}, v{P}, v{P}")
e("s_mov_b32 exec_lo, 0x00ff00ff\ns_mov_b32 exec_hi, 0x00ff00ff")
e(f"global_store_short v4, v{P}, s[14:15] {A.ffl}")
st(4)
stout()
if A.pad:
    e("s_cmp_lg_u32 s24, 0\ns_cbranch_scc1 L_end")
    e(f"L_pad:\ns_memrealtime s[40:41]\ns_waitcnt lgkmcnt(0)\ns_sub_u32 s42, s40, s88\ns_cmp_lt_u32 s42, {A.pad}\ns_cbranch_scc1 L_pad")
e("L_end:\ns_endpgm")
e("L_lead:")
e("s_cmp_lt_u32 s2, 240\ns_cbranch_scc1 L_end")
e("s_cmp_ge_u32 s2, 248\ns_cselect_b32 s24, 1, 2\ns_lshl_b32 s24, s24, 12")
e("s_lshl_b32 s25, s23, 9\ns_add_u32 s24, s24, s25")
e("v_and_b32 v1, 31, v0")
e("v_lshl_add_u32 v1, v1, 4, s24")
e(f"s_lshl_b32 s25, s23, 4\ns_add_u32 s25, s25, {LVL2}")
e("v_lshl_add_u32 v2, v0, 7, s25")
e("v_mov_b32 v6, 0")
e("s_waitcnt lgkmcnt(0)")
st(1)
if A.warm: e("global_load_dword v8, v1, s[18:19] sc1")
e("s_barrier")
e("s_barrier")
e(f"ds_read_b32 v9, v6 offset:{LMSG+8}")
e("s_waitcnt lgkmcnt(0)")
e("v_readfirstlane_b32 s36, v9")
e("s_mul_i32 s37, s36, 0x9e3779b1\ns_and_b32 s37, s37, 0xfffffff0")
e(f"s_mov_b32 s29, {SPIN}")
e("L_lpoll:")
e("global_load_dwordx4 v[8:11], v1, s[18:19] sc1")
e("s_sub_u32 s29, s29, 1")
e("s_waitcnt vmcnt(0)")
e("v_xor_b32 v12, s37, v11\nv_and_b32 v12, 0xfffffff0, v12")
e("v_bitop3_b32 v12, v10, s36, v12 bitop3:0xbe")
e("v_cmp_ne_u32 vcc, 0, v12")
e("s_cbranch_scc1 L_end")
e("s_cbranch_vccnz L_lpoll")
st(2)
for ctrl in ("row_ror:8","row_ror:4","row_ror:2","row_ror:1"): merge_dpp(8,9,12,ctrl)
e("v_mov_b32 v12, v8\nv_mov_b32 v13, v9\nv_mov_b32 v11, s37")
e("s_nop 0")
e("v_permlane16_swap_b32 v8, v12\nv_permlane16_swap_b32 v9, v13")
e("s_nop 1")
e("v_min_u32 v14, v8, v12\nv_max_u32 v8, v8, v12\nv_max3_u32 v9, v9, v13, v14")
e("global_store_dwordx4 v2, v[8:11], s[18:19] sc1")
st(3)
stout()
e("s_endpgm")
X=8
e("L_fix:")
e("s_mov_b32 s30, 0x7f807f80\ns_mov_b32 s36, 0x00400040")
for k in range(36):
    e(f"v_and_b32 v88, s30, v{X+k}\nv_add_u32 v88, 0x00800080, v88\nv_lshrrev_b32 v88, 9, v88\nv_and_or_b32 v{X+k}, v88, s36, v{X+k}")
e("s_branch L_fixed")
e(f""".section .rodata,"a"
.p2align 6
.amdhsa_kernel {K}
  .amdhsa_next_free_vgpr 132
  .amdhsa_next_free_sgpr 102
  .amdhsa_accum_offset 132
  .amdhsa_group_segment_fixed_size 0
  .amdhsa_kernarg_size 64
  .amdhsa_user_sgpr_count 2
  .amdhsa_user_sgpr_kernarg_segment_ptr 1
  .amdhsa_system_sgpr_workgroup_id_x 1
  .amdhsa_float_denorm_mode_32 3
.end_amdhsa_kernel""")
s="\n".join(o)
if A.stamps:
    import stampify
    s=stampify.conv(s).replace("s_lshl_b32 s80, s86, 3","s_lshl_b32 s80, s86, 4")
print(s)
```
